```python
import torch

def _softmax(x, axis=-1):
    return torch.softmax(x, dim=axis)
def _gelu(x):
    return torch.nn.functional.gelu(x, approximate="tanh")
def _silu(x):
    return torch.nn.functional.silu(x)
def _sigmoid(x):
    return torch.sigmoid(x)
def _layernorm(x, axis=-1, eps=1e-5):
    m = x.mean(dim=axis, keepdim=True)
    v = x.var(dim=axis, keepdim=True, unbiased=False)
    return (x - m) / torch.sqrt(v + eps)
def _scatter_add(tgt, idx, src, axis=0):
    return tgt.clone().index_add_(axis, idx, src)
def _segment_sum(src, seg, n):
    out = torch.zeros((n,) + src.shape[1:], dtype=src.dtype)
    return out.index_add_(0, seg, src)
def _pad(x, pw):
    flat = tuple(v for pair in reversed(pw) for v in pair)
    return torch.nn.functional.pad(x, flat)

kernel_name = 'concat_heads__mha_block_cached__gqa_block_cached__near_ridge'

def setup_inputs():

    _w = (lambda a: (lambda t: t.to(torch.bfloat16) if t.is_floating_point() else t)(torch.as_tensor(a)))
    def _A_setup():
        B, Sq, D = 8, 208, 512
        H, Sk, Dh = 32, 512, 128
        return {
            "x": _w((lambda *s: torch.randn(*s, dtype=torch.bfloat16) * 0.8)(B, Sq, D)),
            "k_cache": _w((lambda *s: torch.randn(*s, dtype=torch.bfloat16) * 0.8)(B, H, Sk, Dh)),
            "v_cache": _w((lambda *s: torch.randn(*s, dtype=torch.bfloat16) * 0.05)(B, H, Sk, Dh)),
            "wq": _w((lambda *s: torch.randn(*s, dtype=torch.bfloat16) * 0.8)(D, H * Dh) * (D ** -0.5)),
            "wo": _w((lambda *s: torch.randn(*s, dtype=torch.bfloat16) * 0.05)(H * Dh, D) * ((H * Dh) ** -0.5)),
        }
    _A_in = _A_setup()

    def _B_setup():
        B, Sq, D = 8, 208, 512
        Hq, Hkv, Sk, Dh = 32, 32, 512, 128
        assert Hq % Hkv == 0, (Hq, Hkv)
        return {
            "x": _w((lambda *s: torch.randn(*s, dtype=torch.bfloat16) * 0.8)(B, Sq, D)),
            "k_cache": _w((lambda *s: torch.randn(*s, dtype=torch.bfloat16) * 0.8)(B, Hkv, Sk, Dh)),
            "v_cache": _w((lambda *s: torch.randn(*s, dtype=torch.bfloat16) * 0.05)(B, Hkv, Sk, Dh)),
            "wq": _w((lambda *s: torch.randn(*s, dtype=torch.bfloat16) * 0.8)(D, Hq * Dh) * (D ** -0.5)),
            "wo": _w((lambda *s: torch.randn(*s, dtype=torch.bfloat16) * 0.05)(Hq * Dh, D) * ((Hq * Dh) ** -0.5)),
        }
    _B_in = _B_setup()

    return {
        "A_x": _A_in["x"],
        "A_k_cache": _A_in["k_cache"],
        "A_v_cache": _A_in["v_cache"],
        "A_wq": _A_in["wq"],
        "A_wo": _A_in["wo"],
        "B_x": _B_in["x"],
        "B_k_cache": _B_in["k_cache"],
        "B_v_cache": _B_in["v_cache"],
        "B_wq": _B_in["wq"],
        "B_wo": _B_in["wo"],
    }

def reference(A_x, A_k_cache, A_v_cache, A_wq, A_wo, B_x, B_k_cache, B_v_cache, B_wq, B_wo):
    def _A_ref(x, k_cache, v_cache, wq, wo):
        B, Sq, D = x.shape
        H, Dh = 32, 128
        q = (lambda x, *d: x.permute(*d))((x @ wq).reshape(B, Sq, H, Dh), 0, 2, 1, 3)
        scores = torch.einsum("bhqd,bhkd->bhqk", q, k_cache) * (Dh ** -0.5)
        p = _softmax(scores, axis=-1)
        o = torch.einsum("bhqk,bhkd->bhqd", p, v_cache)
        return (lambda x, *d: x.permute(*d))(o, 0, 2, 1, 3).reshape(B, Sq, H * Dh) @ wo

    def _B_ref(x, k_cache, v_cache, wq, wo):
        B, Sq, D = x.shape
        Hq, Dh = 32, 128
        Hkv = k_cache.shape[1]
        rep = Hq // Hkv
        q = (lambda x, *d: x.permute(*d))((x @ wq).reshape(B, Sq, Hq, Dh), 0, 2, 1, 3)
        k = (lambda x, n, axis: torch.repeat_interleave(x, n, dim=axis))(k_cache, rep, axis=1)
        v = (lambda x, n, axis: torch.repeat_interleave(x, n, dim=axis))(v_cache, rep, axis=1)
        scores = torch.einsum("bhqd,bhkd->bhqk", q, k) * (Dh ** -0.5)
        p = _softmax(scores, axis=-1)
        o = torch.einsum("bhqk,bhkd->bhqd", p, v)
        return (lambda x, *d: x.permute(*d))(o, 0, 2, 1, 3).reshape(B, Sq, Hq * Dh) @ wo

    a = _A_ref(A_x, A_k_cache, A_v_cache, A_wq, A_wo)
    b = _B_ref(B_x, B_k_cache, B_v_cache, B_wq, B_wo)
    return torch.concatenate([a, b], axis=-1)
```

```python
import struct

class Reg:
    __slots__ = ("k", "i", "n")
    def __init__(self, k, i, n=1):
        self.k, self.i, self.n = k, i, n
    def __str__(self):
        return f"{self.k}{self.i}" if self.n == 1 else f"{self.k}[{self.i}:{self.i+self.n-1}]"
    __repr__ = __str__
    def regs(self):
        return {(self.k, self.i + j) for j in range(self.n)}
    def sub(self, off, n=1):
        assert off + n <= self.n, (self, off, n)
        return Reg(self.k, self.i + off, n)
    def __getitem__(self, j):
        return self.sub(j, 1)

def v(i, n=1): return Reg("v", i, n)
def a(i, n=1): return Reg("a", i, n)
def s(i, n=1): return Reg("s", i, n)
VCC = "vcc"; EXEC = "exec"; M0 = "m0"

def f32hex(x):
    return "0x%08x" % struct.unpack("<I", struct.pack("<f", x))[0]

TRANS = ("v_exp_f32", "v_log_f32", "v_rcp_f32", "v_rsq_f32", "v_sqrt_f32", "v_sin_f32", "v_cos_f32")

def opregs(o):
    if isinstance(o, Reg): return o.regs()
    if isinstance(o, str):
        t = o.lstrip("-")
        if t == "vcc": return {("s", "vcc")}
        if t == "exec": return {("s", "exec")}
        if t == "m0": return {("s", "m0")}
    if isinstance(o, Neg): return o.r.regs()
    return set()

class Neg:
    def __init__(self, r): self.r = r
    def __str__(self): return "-" + str(self.r)

class Ins:
    __slots__ = ("op", "cls", "dst", "src", "pos", "text", "srcC", "srcAB", "data")

class Emitter:
    def __init__(self):
        self.lines = []
        self.hist = []
        self.pos = 0
        self.lgkm = []
        self.vm = []
        self.errors = []
        self.count = {}
    def raw(self, text):
        self.lines.append(text)
    def comment(self, t):
        self.lines.append("    ; " + t)
    def label(self, name, reset=True):
        self.lines.append(name + ":")
    def err(self, msg):
        self.errors.append(f"line {len(self.lines)}: {msg}")
    def i(self, op, *ops, mods="", tag=None):
        I = Ins(); I.op = op; I.srcC = set(); I.srcAB = set(); I.data = set()
        text = "    " + op + (" " + ", ".join(str(o) for o in ops) if ops else "") + ((" " + mods) if mods else "")
        I.text = text
        dst = set(); src = set()
        if op.startswith("v_mfma"):
            I.cls = "mfma"; dst = opregs(ops[0]); I.srcAB = opregs(ops[1]) | opregs(ops[2]); I.srcC = opregs(ops[3])
            src = I.srcAB | I.srcC
        elif op.startswith("v_permlane") and "swap" in op:
            I.cls = "valu"; dst = opregs(ops[0]) | opregs(ops[1]); src = set(dst)
        elif op.startswith("v_"):
            I.cls = "valu"; dst = opregs(ops[0])
            for o in ops[1:]: src |= opregs(o)
            if op.startswith("v_fmac") or op.startswith("v_pk_fmac"): src |= dst
            if op in ("v_add_co_u32", "v_addc_co_u32", "v_sub_co_u32"):
                dst |= opregs(ops[1]); src = set()
                for o in ops[2:]: src |= opregs(o)
        elif op.startswith("ds_read"):
            I.cls = "ds"; dst = opregs(ops[0]); src = opregs(ops[1])
        elif op.startswith("ds_write"):
            I.cls = "ds"
            for o in ops: src |= opregs(o)
        elif op.startswith("buffer_load") or op.startswith("global_load"):
            I.cls = "vmem"
            if " lds" in (" " + mods):
                for o in ops: src |= opregs(o)
                src |= {("s", "m0")}
                I.cls = "vmem_lds"
            else:
                dst = opregs(ops[0])
                for o in ops[1:]: src |= opregs(o)
        elif op.startswith("buffer_store") or op.startswith("global_store"):
            I.cls = "vmem"
            for o in ops: src |= opregs(o)
            if op.endswith("x4") or op.endswith("x3"):
                I.data = opregs(ops[0]) if op.startswith("buffer") else opregs(ops[1])
        elif op.startswith("s_"):
            I.cls = "salu"
            if op.startswith("s_load"):
                I.cls = "smem"; dst = opregs(ops[0])
                for o in ops[1:]: src |= opregs(o)
            elif op in ("s_memtime", "s_memrealtime"):
                I.cls = "smem"; dst = opregs(ops[0])
            elif op.startswith(("s_cmp", "s_cbranch", "s_branch", "s_waitcnt", "s_barrier", "s_nop", "s_setprio", "s_endpgm", "s_sleep", "s_setpc")):
                for o in ops: src |= opregs(o)
            else:
                dst = opregs(ops[0])
                for o in ops[1:]: src |= opregs(o)
        else:
            raise ValueError(op)
        I.dst = dst; I.src = src; I.pos = self.pos
        self._check(I)
        self.lines.append(text)
        self.count[I.cls] = self.count.get(I.cls, 0) + 1
        if op == "s_nop":
            self.pos += int(ops[0]) + 1
        else:
            self.pos += 1
        self.hist.append(I)
        if len(self.hist) > 40: self.hist.pop(0)
        if I.cls == "ds":
            self.lgkm.append((tag, dst))
        elif I.cls in ("vmem", "vmem_lds"):
            self.vm.append((tag, dst))
        return I
    def _check(self, C):
        touched = C.src | C.dst
        for tag, d in self.lgkm:
            if d & touched: self.err(f"LGKM hazard: {C.text.strip()} touches pending ds_read dst {sorted(d & touched)[:3]}")
        for tag, d in self.vm:
            if tag == "pf": continue
            if d & touched: self.err(f"VM hazard: {C.text.strip()} touches pending load dst {sorted(d & touched)[:3]}")
        for P in self.hist:
            dist = C.pos - P.pos - (int(P.text.split()[1]) + 1 if P.op == "s_nop" else 1)
            dist = C.pos - P.pos - 1 if P.op != "s_nop" else dist
            def need(n, why):
                if dist < n: self.err(f"HAZARD {why}: need {n} have {dist}: [{P.text.strip()}] -> [{C.text.strip()}]")
            if P.cls == "valu":
                vd = {r for r in P.dst if r[0] in "va"}
                sd = {r for r in P.dst if r[0] == "s"}
                if C.cls == "mfma" and vd & C.src: need(2, "valu->mfma")
                if C.op.startswith("v_permlane") and vd & C.src: need(2, "valu->permlane")
                if P.op in TRANS and C.cls == "valu" and C.op not in TRANS and vd & C.src: need(1, "trans->valu")
                if C.cls == "valu" and sd & C.src: need(2, "valu sgpr->valu")
                if C.cls in ("vmem", "vmem_lds") and sd & C.src: need(5, "valu sgpr->vmem")
                if C.op.startswith(("v_readfirstlane", "v_readlane")) and vd & C.src: need(1, "valu->readlane")
            if P.cls == "mfma":
                d = P.dst
                if C.cls == "mfma":
                    if d & C.srcAB: need(8, "mfma->mfma AB")
                    if d & C.srcC and d != C.srcC: need(6, "mfma->mfma C overlap")
                elif C.cls in ("valu", "ds", "vmem", "vmem_lds"):
                    if d & (C.src | C.dst): need(8, "mfma->valu/mem")
                    if C.cls == "valu" and P.srcC & C.dst: need(3, "mfma srcC WAR")
            if P.cls == "salu" and ("s", "m0") in P.dst and C.cls == "vmem_lds": need(1, "m0->ldsdma")
            if P.data and P.data & C.dst:
                need(2 if C.cls == "valu" else 1, "store data WAR")
    def _apply_wait(self, vm=None, lgkm=None):
        if vm is not None:
            while len(self.vm) > vm: self.vm.pop(0)
        if lgkm is not None:
            while len(self.lgkm) > lgkm: self.lgkm.pop(0)
    def waitcnt(self, vm=None, lgkm=None):
        parts = []
        if vm is not None:
            assert 0 <= vm <= 63; parts.append(f"vmcnt({vm})")
        if lgkm is not None:
            assert 0 <= lgkm <= 15; parts.append(f"lgkmcnt({lgkm})")
        self.i("s_waitcnt", " ".join(parts))
        self._apply_wait(vm, lgkm)
    def _need(self, q, regs=None, tag=None):
        last = -1
        for n, (t, d) in enumerate(q):
            if (regs is not None and d & regs) or (tag is not None and t == tag): last = n
        if last < 0: return None
        return len(q) - 1 - last
    def wait_lgkm(self, *regs, tag=None):
        rs = set()
        for r in regs: rs |= r.regs()
        n = self._need(self.lgkm, rs if regs else None, tag)
        if n is not None:
            self.waitcnt(lgkm=min(n, 15))
            if n > 15: self._apply_wait(lgkm=15)
    def wait_vm(self, *regs, tag=None):
        rs = set()
        for r in regs: rs |= r.regs()
        n = self._need(self.vm, rs if regs else None, tag)
        if n is not None: self.waitcnt(vm=min(n, 63))
    def nop(self, n):
        while n > 0:
            k = min(n, 16); self.i("s_nop", k - 1); n -= k
    def reset_hist(self):
        self.hist = []
    def text(self):
        return "\n".join(self.lines) + "\n"
```

```python
import sys, math
from asmdsl import *

NAME = "concat_heads__mha_block_cached__gqa_block_cached__near_ridge"
OFRAG_BYTES = 2 * 128 * 104 * 1024
WFRAG_BYTES = 2 * 128 * 32 * 1024
WS_USED = OFRAG_BYTES + WFRAG_BYTES
SLOT = 18432
DSLOT = 2 * SLOT
XBASE = 4 * SLOT
LDS1 = 81920
CSCALE = math.log2(math.e) / math.sqrt(128.0)
THRESH = float(2 ** 30)

def gen_attn(E):
    sX, sK, sV, sWQ, sWO, sWS = s(44, 4), s(48, 4), s(52, 4), s(56, 4), s(60, 4), s(64, 4)
    s_p, s_b, s_h, s_w = s(68), s(69), s(70), s(71)
    s_xt = [s(72), s(73), s(74), s(75)]
    s_m0w, s_sow = s(76), s(77)
    s_m0kv = s(78)
    s_kvoff = s(79)
    s_dnext = s(80)
    s_delta = s(81)
    s_c, s_thr = s(82), s(83)
    s_exact, s_first = s(84), s(85)
    s_j = s(86)
    s_t0, s_t1, s_t2 = s(87), s(88), s(89)
    s_w4608 = s(90)
    s_obase = s(91)
    s_wfbase = s(92)
    v_tid = v(0); v_l16 = v(1); v_dkv = v(2); v_dwq = v(3)
    vK = [v(4), v(5)]
    vV = [v(6), v(7), v(8), v(9)]
    vW = vV
    vW3 = [v(10), v(11)]
    vT3 = [v(10), v(11)]
    mneg = [v(12 + t) for t in range(4)]
    lsum = [v(16 + t) for t in range(4)]
    ssum = [v(20 + t) for t in range(4)]
    tmp = [v(24 + t) for t in range(4)]
    AF = [v(28 + 4 * n, 4) for n in range(4)]
    QB = [v(44, 4), v(76, 4)]
    def S(t, k2): return v(48 + t * 8 + k2 * 4, 4)
    S3 = v(72, 4)
    v_x = v(76)
    def O(t, dt): return a(t * 32 + dt * 4, 4)
    def Q(t, ks): return a(128 + t * 16 + ks * 4, 4)
    def Qacc(t, dt): return a(t * 32 + dt * 4, 4)
    def Qacc3(z): return a(96 + 4 * z, 4)
    XBbase = [("a", 104), ("a", 136), ("v", 44)]
    def XB(buf, t, kc):
        k, b0 = XBbase[buf]
        return Reg(k, b0 + (t * 2 + kc) * 4, 4)

    I = E.i
    E.raw(".globl attn_kernel\n.p2align 8\n.type attn_kernel,@function\nattn_kernel:")
    I("s_cmp_ge_u32", s(2), 512)
    I("s_cbranch_scc1", "L_attn_end")
    I("s_load_dwordx16", s(16, 16), s(0, 2), 0)
    I("s_load_dwordx8", s(32, 8), s(0, 2), 64)
    I("s_load_dwordx2", s(40, 2), s(0, 2), 96)
    I("s_and_b32", s_t0, s(2), 7)
    I("s_lshr_b32", s_t1, s(2), 3)
    I("s_lshr_b32", s_p, s_t0, 2)
    I("s_and_b32", s_t0, s_t0, 3)
    I("s_lshl_b32", s_t0, s_t0, 3)
    I("s_and_b32", s_h, s_t1, 7)
    I("s_add_u32", s_h, s_h, s_t0)
    I("s_lshr_b32", s_b, s_t1, 3)
    I("v_lshrrev_b32", tmp[0], 6, v_tid)
    I("s_nop", 0)
    I("v_readfirstlane_b32", s_w, tmp[0])
    I("v_and_b32", tmp[0], 63, v_tid)
    I("v_lshrrev_b32", tmp[1], 4, tmp[0])
    I("v_bfe_u32", tmp[2], tmp[0], 2, 2)
    I("v_and_b32", tmp[3], 3, tmp[0])
    I("v_lshlrev_b32", v_l16, 4, tmp[0])
    I("v_and_b32", ssum[0], 15, tmp[0])
    I("v_lshlrev_b32", ssum[1], 1, tmp[1])
    I("v_xor_b32", ssum[0], ssum[0], ssum[1])
    I("v_lshlrev_b32", ssum[0], 4, ssum[0])
    I("v_lshl_add_u32", v_dkv, tmp[1], 8, ssum[0])
    I("v_lshl_add_u32", v_dwq, tmp[1], 13, ssum[0])
    I("v_lshl_add_u32", lsum[0], tmp[1], 10, ssum[0])
    I("v_and_b32", ssum[1], 15, tmp[0])
    I("v_lshlrev_b32", ssum[1], 10, ssum[1])
    I("v_lshl_add_u32", v_x, tmp[1], 4, ssum[1])
    I("v_mul_u32_u24", ssum[1], 1152, tmp[2])
    I("v_lshl_add_u32", ssum[1], tmp[3], 8, ssum[1])
    I("v_and_b32", ssum[2], 1, tmp[1])
    I("v_lshl_add_u32", ssum[1], ssum[2], 4, ssum[1])
    I("v_lshrrev_b32", ssum[2], 1, tmp[1])
    for e in range(2):
        I("v_add_u32", ssum[3], 2 * e, ssum[2])
        I("v_xor_b32", ssum[3], ssum[3], tmp[3])
        I("v_lshl_add_u32", vK[e], ssum[3], 5, ssum[1])
    I("v_mul_u32_u24", ssum[1], 2176, tmp[1])
    I("v_lshl_add_u32", ssum[1], tmp[2], 8, ssum[1])
    I("v_lshl_add_u32", ssum[1], tmp[3], 3, ssum[1])
    for x in range(4):
        I("v_xor_b32", ssum[3], x, tmp[2])
        I("v_lshl_add_u32", vW[x], ssum[3], 5, ssum[1])
    I("s_and_b32", s_t0, s_w, 1)
    I("s_lshl_b32", s_t0, s_t0, 1)
    I("s_lshr_b32", s_t1, s_w, 1)
    I("s_lshl_b32", s_t1, s_t1, 7)
    for z in range(2):
        I("s_add_u32", s_t2, s_t0, z)
        I("v_xor_b32", ssum[3], s_t2, tmp[2])
        I("v_lshl_add_u32", vW3[z], ssum[3], 5, ssum[1])
        I("v_add_u32", vW3[z], s_t1, vW3[z])
    I("v_lshlrev_b32", ssum[1], 11, tmp[1])
    I("v_lshl_add_u32", ssum[1], tmp[2], 8, ssum[1])
    I("v_lshl_add_u32", ssum[1], tmp[3], 3, ssum[1])
    I("v_add_u32", ssum[1], XBASE, ssum[1])
    for z in range(2):
        I("s_add_u32", s_t2, s_t0, z)
        I("v_xor_b32", ssum[3], s_t2, tmp[2])
        I("v_lshl_add_u32", lsum[1 + z], ssum[3], 5, ssum[1])
        I("v_add_u32", lsum[1 + z], s_t1, lsum[1 + z])
    I("s_mul_i32", s_m0w, s_w, 4352)
    I("s_lshl_b32", s_sow, s_w, 17)
    I("s_mul_i32", s_m0kv, s_w, 4608)
    I("s_mov_b32", s_w4608, s_m0kv)
    I("s_lshl_b32", s_kvoff, s_w, 12)
    I("s_mul_i32", s_t0, s_w, 48 * 1024)
    for t in range(3):
        I("s_add_u32", s_xt[t], s_t0, t * 16384)
    I("s_mov_b32", s_xt[3], 192 * 1024)
    I("s_mov_b32", s_c, f32hex(CSCALE))
    I("s_mov_b32", s_thr, f32hex(THRESH))
    E.waitcnt(lgkm=0)
    I("s_cmp_eq_u32", s_p, 0)
    I("s_cselect_b64", s(4, 2), s(16, 2), s(26, 2))
    I("s_cselect_b64", s(6, 2), s(18, 2), s(28, 2))
    I("s_cselect_b64", s(8, 2), s(20, 2), s(30, 2))
    I("s_cselect_b64", s(10, 2), s(22, 2), s(32, 2))
    I("s_cselect_b64", s(12, 2), s(24, 2), s(34, 2))
    def srd(dst, ptr, off_sreg, nrec):
        I("s_add_u32", dst[0], ptr[0], off_sreg)
        I("s_addc_u32", dst[1], ptr[1], 0)
        if isinstance(nrec, Reg): I("s_mov_b32", dst[2], nrec)
        else: I("s_mov_b32", dst[2], nrec)
        I("s_mov_b32", dst[3], "0x00020000")
    I("s_mul_i32", s_t0, s_b, 212992)
    srd(sX, s(4, 2), s_t0, 212992)
    I("s_lshl_b32", s_t0, s_b, 5)
    I("s_add_u32", s_t0, s_t0, s_h)
    I("s_lshl_b32", s_t0, s_t0, 17)
    srd(sK, s(6, 2), s_t0, 131072)
    srd(sV, s(8, 2), s_t0, 131072)
    I("s_lshl_b32", s_t0, s_h, 8)
    I("s_sub_u32", s_t1, 4194304, s_t0)
    srd(sWQ, s(10, 2), s_t0, s_t1)
    I("s_lshl_b32", s_t0, s_h, 2)
    I("s_lshr_b32", s_t1, s_b, 1)
    I("s_add_u32", s_t0, s_t0, s_t1)
    I("s_lshl_b32", s_t1, s_p, 7)
    I("s_add_u32", s_t1, s_t1, s_t0)
    I("s_lshl_b32", s_t1, s_t1, 5)
    I("s_and_b32", s_t2, s_b, 1)
    I("s_lshl_b32", s_t2, s_t2, 4)
    I("s_add_u32", s_t1, s_t1, s_t2)
    I("s_lshl_b32", s_t2, s_w, 1)
    I("s_add_u32", s_t1, s_t1, s_t2)
    I("s_lshl_b32", s_t1, s_t1, 10)
    I("s_add_u32", s_wfbase, s_t1, OFRAG_BYTES)
    I("s_lshl_b32", s_t0, s_t0, 15)
    I("s_and_b32", s_t1, s_b, 1)
    I("s_lshl_b32", s_t1, s_t1, 9)
    I("s_add_u32", s_t0, s_t0, s_t1)
    I("s_sub_u32", s_t1, 32768, s_t1)
    srd(sWO, s(12, 2), s_t0, s_t1)
    I("s_mov_b32", s_t0, 0)
    srd(sWS, s(40, 2), s_t0, WS_USED)
    I("s_lshl_b32", s_t0, s_p, 7)
    I("s_lshl_b32", s_t1, s_h, 2)
    I("s_add_u32", s_t0, s_t0, s_t1)
    I("s_mul_i32", s_t0, s_t0, 104)
    I("s_mul_i32", s_t1, s_b, 13)
    I("s_add_u32", s_t0, s_t0, s_t1)
    I("s_lshl_b32", s_obase, s_t0, 10)

    def dma_wq(ch, tag):
        base = ((ch >> 1) & 1) * DSLOT + (ch & 1) * SLOT
        for q in range(4):
            I("s_add_u32", M0, s_m0w, base + 1024 * q + 128 * (q >> 1))
            I("s_add_u32", s_t0, s_sow, ch * 524288 + q * 32768)
            I("buffer_load_dwordx4", v_dwq, sWQ, s_t0, mods="offen lds", tag=tag)
    def dma_kv_static(dbase, tag):
        for which, srd_ in ((0, sK), (1, sV)):
            for q in range(4):
                I("s_add_u32", M0, s_m0kv, dbase + which * SLOT + 128 * q)
                I("s_nop", 0)
                I("buffer_load_dwordx4", v_dkv, srd_, s_kvoff, mods=f"offen offset:{1024*q} lds" if q else "offen lds", tag=tag)
        I("s_add_u32", s_kvoff, s_kvoff, 16384)
    def dma_kv_dyn(tag):
        I("s_add_u32", s_t1, s_m0kv, s_dnext)
        for which, srd_ in ((0, sK), (1, sV)):
            for q in range(4):
                I("s_add_u32", M0, s_t1, which * SLOT + 128 * q)
                I("s_nop", 0)
                I("buffer_load_dwordx4", v_dkv, srd_, s_kvoff, mods=f"offen offset:{1024*q} lds" if q else "offen lds", tag=tag)
        I("s_add_u32", s_kvoff, s_kvoff, 16384)
    def dma_slab(hf, tag):
        for q in range(2):
            I("s_lshl_b32", s_t0, s_w, 11)
            I("s_add_u32", M0, s_t0, XBASE + 1024 * q)
            I("s_lshl_b32", s_t0, s_w, 13)
            I("s_add_u32", s_t0, s_t0, q * 4096 + hf * 256)
            I("buffer_load_dwordx4", lsum[0], sWO, s_t0, mods="offen lds", tag=tag)
    def slab_store(hf):
        for z in range(2):
            for hh in range(2):
                I("ds_read_b64_tr_b16", AF[z].sub(2 * hh, 2), lsum[1 + z], mods=f"offset:{1024*hh}")
        for z in range(2):
            E.wait_lgkm(AF[z])
            I("s_add_u32", s_t0, s_wfbase, (hf * 8 + z) * 1024)
            I("buffer_store_dwordx4", AF[z], v_l16, sWS, s_t0, mods="offen")
        I("s_nop", 1)
    def x_loads(ch):
        buf = ch % 3
        for t in range(4):
            for kc in range(2):
                I("buffer_load_dwordx4", XB(buf, t, kc), v_x, sX, s_xt[t], mods=f"offen offset:{ch*128+kc*64}", tag=f"x{ch}")

    def pipeline(frags, depth=3):
        n = len(frags)
        regs = [None] * n
        for k in range(n + depth):
            if k < n:
                regs[k] = frags[k][0](k)
            m = k - depth
            if m >= 0:
                E.wait_lgkm(*regs[m])
                frags[m][1](m)

    dma_slab(0, "slab0")
    dma_wq(0, "dma0"); dma_wq(1, "dma0")
    x_loads(0); x_loads(1)

    for ch in range(8):
        st = ch >> 1
        cbase = (st & 1) * DSLOT + (ch & 1) * SLOT
        if ch % 2 == 0:
            E.comment(f"---- Q step {st}")
            E.wait_vm(tag=f"dma{st}")
            I("s_barrier")
            if st == 1: dma_slab(1, "slab1")
            if st < 3:
                dma_wq(2 * st + 2, f"dma{st+1}"); dma_wq(2 * st + 3, f"dma{st+1}")
            else:
                dma_kv_static(0, "dma4")
            if st == 0: slab_store(0)
            if st == 2: slab_store(1)
        if ch + 2 < 8: x_loads(ch + 2)
        E.wait_vm(tag=f"x{ch}")
        frags = []
        for kc in range(2):
            for dt in range(8):
                def ld(k, kc=kc, dt=dt):
                    b_ = AF[k % 4]
                    for hh in range(2):
                        I("ds_read_b64_tr_b16", b_.sub(2 * hh, 2), vW[dt & 3], mods=f"offset:{cbase+8704*kc+1024*hh+128*(dt>>2)}")
                    return [b_]
                def mm(k, kc=kc, dt=dt):
                    b_ = AF[k % 4]
                    for t in range(3):
                        I("v_mfma_f32_16x16x32_bf16", Qacc(t, dt), b_, XB(ch % 3, t, kc), 0 if (ch == 0 and kc == 0) else Qacc(t, dt))
                frags.append((ld, mm))
            for z in range(2):
                def ld(k, kc=kc, z=z):
                    b_ = AF[k % 4]
                    for hh in range(2):
                        I("ds_read_b64_tr_b16", b_.sub(2 * hh, 2), vW3[z], mods=f"offset:{cbase+8704*kc+1024*hh}")
                    return [b_]
                def mm(k, kc=kc, z=z):
                    b_ = AF[k % 4]
                    I("v_mfma_f32_16x16x32_bf16", Qacc3(z), b_, XB(ch % 3, 3, kc), 0 if (ch == 0 and kc == 0) else Qacc3(z))
                frags.append((ld, mm))
        pipeline(frags)

    E.nop(8)
    def pack_pair(lo, hi, scale=None):
        T0, T1, R = AF[1], AF[2], AF[0]
        for r in range(4): I("v_accvgpr_read_b32", T0[r], lo[r])
        for r in range(4): I("v_accvgpr_read_b32", T1[r], hi[r])
        if scale is not None:
            for r in range(4): I("v_mul_f32", T0[r], scale, T0[r])
            for r in range(4): I("v_mul_f32", T1[r], scale, T1[r])
        I("v_cvt_pk_bf16_f32", R[0], T0[0], T0[1])
        I("v_cvt_pk_bf16_f32", R[1], T0[2], T0[3])
        I("v_cvt_pk_bf16_f32", R[2], T1[0], T1[1])
        I("v_cvt_pk_bf16_f32", R[3], T1[2], T1[3])
        I("s_nop", 1)
        I("v_permlane32_swap_b32", R[0], R[2])
        I("v_permlane32_swap_b32", R[1], R[3])
        I("s_nop", 0)
        I("v_permlane16_swap_b32", R[0], R[2])
        I("v_permlane16_swap_b32", R[1], R[3])
        return R
    for t in range(3):
        for k in range(4):
            R = pack_pair(Qacc(t, 2 * k), Qacc(t, 2 * k + 1))
            for r in range(4): I("v_accvgpr_write_b32", Q(t, k)[r], R[r])
    R = pack_pair(Qacc3(0), Qacc3(1))
    I("s_lshl_b32", s_t0, s_w, 10)
    I("s_add_u32", s_t0, s_t0, XBASE)
    I("v_add_u32", tmp[0], s_t0, v_l16)
    I("ds_write_b128", tmp[0], R)
    I("v_add_u32", v_dwq, XBASE, v_l16)
    for n in range(128): I("v_accvgpr_write_b32", a(n), 0)
    for t in range(4):
        I("v_mov_b32", mneg[t], "0x7f800000")
        I("v_mov_b32", lsum[t], 0)
    I("v_bfe_u32", tmp[0], v_tid, 4, 2)
    I("v_lshlrev_b32", tmp[0], 10, tmp[0])
    I("v_sub_u32", tmp[0], SLOT, tmp[0])
    for x in range(4): I("v_add_u32", vV[x], vV[x], tmp[0])
    I("s_mov_b32", s_exact, 1)
    I("s_mov_b32", s_first, 1)
    I("s_mov_b32", s_j, 0)
    I("s_mov_b32", s_dnext, DSLOT)
    I("s_mov_b32", s_delta, DSLOT)

    E.label("L_blk")
    E.waitcnt(vm=0, lgkm=0)
    I("s_barrier")
    I("s_cmp_ge_u32", s_j, 7)
    I("s_cbranch_scc1", "L_nodma")
    dma_kv_dyn("kv")
    E.label("L_nodma")
    for sb in range(2):
        E.label(f"L_redo{sb}")
        if sb == 0:
            for e in range(2): I("v_add_u32", vT3[e], s_w4608, vK[e])
        frags = []
        for k2 in range(2):
            for ks in range(4):
                def ld(k, k2=k2, ks=ks):
                    b_ = AF[k % 4]
                    I("ds_read_b128", b_, vK[ks & 1], mods=f"offset:{4608*(2*sb+k2)+128*(ks>>1)}")
                    return [b_]
                def mm(k, k2=k2, ks=ks):
                    b_ = AF[k % 4]
                    for t in range(3):
                        I("v_mfma_f32_16x16x32_bf16", S(t, k2), b_, Q(t, ks), 0 if ks == 0 else S(t, k2))
                frags.append((ld, mm))
        if sb == 0:
            t3 = []
            for ks in range(4):
                def ld(k, ks=ks):
                    b_ = AF[k % 4]
                    I("ds_read_b128", b_, vT3[ks & 1], mods=f"offset:{128*(ks>>1)}")
                    I("ds_read_b128", QB[ks & 1], v_dwq, mods=f"offset:{1024*ks}")
                    return [b_, QB[ks & 1]]
                def mm(k, ks=ks):
                    b_ = AF[k % 4]
                    I("v_mfma_f32_16x16x32_bf16", S3, b_, QB[ks & 1], 0 if ks == 0 else S3)
                t3.append((ld, mm))
            fr = []
            for n in range(8):
                fr.append(frags[n])
                if n % 2 == 0: fr.append(t3[n // 2])
            frags = fr
        pipeline(frags, depth=2 if sb == 0 else 3)
        I("s_cmp_lg_u32", s_exact, 0)
        I("s_cbranch_scc1", f"L_exact{sb}")
        E.label(f"L_exret{sb}")
        tiles = [(t, [S(t, 0)[r] for r in range(4)] + [S(t, 1)[r] for r in range(4)]) for t in range(3)]
        if sb == 0: tiles = [(3, [S3[r] for r in range(4)])] + tiles
        E.nop(6)
        for t, rs in tiles:
            for r in rs: I("v_fma_f32", r, r, s_c, mneg[t])
            for r in rs: I("v_exp_f32", r, r)
            I("v_add_f32", ssum[t], rs[0], rs[1])
            for r in rs[2:]: I("v_add_f32", ssum[t], ssum[t], r)
            for n in range(len(rs) // 2): I("v_cvt_pk_bf16_f32", rs[n], rs[2 * n], rs[2 * n + 1])
        I("v_max3_f32", tmp[0], ssum[0], ssum[1], ssum[2])
        if sb == 0: I("v_max_f32", tmp[0], tmp[0], ssum[3])
        I("v_cmp_lt_f32", VCC, s_thr, tmp[0])
        I("s_cbranch_vccnz", f"L_fix{sb}")
        E.label(f"L_fixret{sb}")
        I("s_mov_b32", s_exact, 0)
        for t, rs in tiles: I("v_add_f32", lsum[t], lsum[t], ssum[t])
        frags = []
        for dt in range(8):
            def ld(k, dt=dt):
                b_ = AF[k % 4]
                for hh in range(2):
                    I("ds_read_b64_tr_b16", b_.sub(2 * hh, 2), vV[dt & 3], mods=f"offset:{4608*(2*sb+hh)+128*(dt>>2)}")
                return [b_]
            def mm(k, dt=dt):
                b_ = AF[k % 4]
                for t in range(3):
                    I("v_mfma_f32_16x16x32_bf16", O(t, dt), b_, S(t, 0), O(t, dt))
            frags.append((ld, mm))
            if sb == 0:
                def ld(k, dt=dt):
                    b_ = AF[k % 4]
                    tv = vT3[dt & 1]
                    I("v_add_u32", tv, s_w4608, vV[dt & 3])
                    I("ds_read_b64_tr_b16", b_.sub(0, 2), tv, mods=f"offset:{128*(dt>>2)}")
                    return [b_.sub(0, 2)]
                def mm(k, dt=dt):
                    b_ = AF[k % 4]
                    I("v_mfma_f32_16x16x16_bf16", O(3, dt), b_.sub(0, 2), S3.sub(0, 2), O(3, dt))
                frags.append((ld, mm))
        pipeline(frags)
    for r in vK + vV: I("v_add_u32", r, s_delta, r)
    I("s_sub_u32", s_dnext, DSLOT, s_dnext)
    I("s_sub_u32", s_delta, 0, s_delta)
    I("s_add_u32", s_j, s_j, 1)
    I("s_cmp_lt_u32", s_j, 8)
    I("s_cbranch_scc1", "L_blk")

    def xreduce(r, op):
        I("v_mov_b32", tmp[0], r)
        I("s_nop", 1)
        I("v_permlane32_swap_b32", tmp[0], r)
        I(op, r, r, tmp[0])
        I("v_mov_b32", tmp[0], r)
        I("s_nop", 1)
        I("v_permlane16_swap_b32", tmp[0], r)
        I(op, r, r, tmp[0])
    for t in range(4): xreduce(lsum[t], "v_add_f32")
    E.nop(8)
    I("s_lshl_b32", s_t0, s_w, 13)
    I("v_add_u32", tmp[1], s_t0, v_l16)
    for dt in range(8): I("ds_write_b128", tmp[1], O(3, dt), mods=f"offset:{dt*1024}")
    I("v_lshrrev_b32", tmp[2], 1, v_l16)
    I("s_lshl_b32", s_t0, s_w, 9)
    I("v_add_u32", tmp[3], s_t0, tmp[2])
    I("v_mov_b32", ssum[0], mneg[3])
    I("v_mov_b32", ssum[1], lsum[3])
    I("ds_write_b64", tmp[3], v(ssum[0].i, 2), mods="offset:32768")
    I("s_mul_i32", s_t1, s_w, 3 * 1024)
    I("s_add_u32", s_t1, s_t1, s_obase)
    for t in range(3):
        I("v_rcp_f32", ssum[2], lsum[t])
        I("s_nop", 0)
        for k in range(4):
            R = pack_pair(O(t, 2 * k), O(t, 2 * k + 1), scale=ssum[2])
            I("s_add_u32", s_t0, s_t1, (k * 104 + t) * 1024)
            I("buffer_store_dwordx4", R, v_l16, sWS, s_t0, mods="offen")
            I("s_nop", 1)
    E.waitcnt(lgkm=0)
    I("s_barrier")
    ST = [v(48 + 2 * w_, 2) for w_ in range(4)]
    for w_ in range(4): I("ds_read_b64", ST[w_], tmp[2], mods=f"offset:{32768+512*w_}")
    I("s_lshl_b32", s_t0, s_w, 11)
    I("v_add_u32", tmp[1], s_t0, v_l16)
    PB = [[v(56 + 8 * w_ + 4 * z, 4) if w_ < 3 else v(28 + 4 * z + 8, 4) for z in range(2)] for w_ in range(4)]
    for w_ in range(4):
        for z in range(2): I("ds_read_b128", PB[w_][z], tmp[1], mods=f"offset:{8192*w_+1024*z}")
    E.wait_lgkm(*ST)
    I("v_min_f32", tmp[0], ST[0][0], ST[1][0])
    I("v_min3_f32", tmp[0], tmp[0], ST[2][0], ST[3][0])
    for w_ in range(4): I("v_sub_f32", ST[w_][0], tmp[0], ST[w_][0])
    for w_ in range(4): I("v_exp_f32", ST[w_][0], ST[w_][0])
    I("s_nop", 0)
    I("v_mul_f32", tmp[0], ST[0][0], ST[0][1])
    for w_ in range(1, 4): I("v_fmac_f32", tmp[0], ST[w_][0], ST[w_][1])
    I("v_rcp_f32", tmp[0], tmp[0])
    I("s_nop", 0)
    for w_ in range(4): I("v_mul_f32", ST[w_][0], ST[w_][0], tmp[0])
    E.waitcnt(lgkm=0)
    for z in range(2):
        for r in range(4):
            I("v_mul_f32", PB[0][z][r], PB[0][z][r], ST[0][0])
            for w_ in range(1, 4): I("v_fmac_f32", PB[0][z][r], PB[w_][z][r], ST[w_][0])
    R = AF[0]
    I("v_cvt_pk_bf16_f32", R[0], PB[0][0][0], PB[0][0][1])
    I("v_cvt_pk_bf16_f32", R[1], PB[0][0][2], PB[0][0][3])
    I("v_cvt_pk_bf16_f32", R[2], PB[0][1][0], PB[0][1][1])
    I("v_cvt_pk_bf16_f32", R[3], PB[0][1][2], PB[0][1][3])
    I("s_nop", 1)
    I("v_permlane32_swap_b32", R[0], R[2])
    I("v_permlane32_swap_b32", R[1], R[3])
    I("s_nop", 0)
    I("v_permlane16_swap_b32", R[0], R[2])
    I("v_permlane16_swap_b32", R[1], R[3])
    I("s_mul_i32", s_t0, s_w, 104 * 1024)
    I("s_add_u32", s_t0, s_t0, s_obase)
    I("s_add_u32", s_t0, s_t0, 12 * 1024)
    I("buffer_store_dwordx4", R, v_l16, sWS, s_t0, mods="offen")
    E.label("L_attn_end")
    I("s_endpgm")

    for sb in range(2):
        E.reset_hist(); E.vm = []; E.lgkm = []
        E.label(f"L_fix{sb}")
        I("s_cmp_lg_u32", s_exact, 0)
        I("s_cbranch_scc1", f"L_fixret{sb}")
        I("s_mov_b32", s_exact, 1)
        I("s_branch", f"L_redo{sb}")
        E.label(f"L_exact{sb}")
        E.nop(16)
        tiles = [(t, [S(t, 0)[r] for r in range(4)] + [S(t, 1)[r] for r in range(4)]) for t in range(3)]
        if sb == 0: tiles = tiles + [(3, [S3[r] for r in range(4)])]
        for t, rs in tiles:
            mx = tmp[1]
            I("v_max3_f32", mx, rs[0], rs[1], rs[2])
            if len(rs) == 8:
                I("v_max3_f32", mx, mx, rs[3], rs[4])
                I("v_max3_f32", mx, mx, rs[5], rs[6])
                I("v_max_f32", mx, mx, rs[7])
            else:
                I("v_max_f32", mx, mx, rs[3])
            xreduce(mx, "v_max_f32")
            I("v_mul_f32", mx, s_c, mx)
            I("v_sub_f32", mx, 0, mx)
            I("v_min_f32", mx, mx, mneg[t])
            I("v_sub_f32", ssum[t], mx, mneg[t])
            I("v_exp_f32", ssum[t], ssum[t])
            I("v_mov_b32", mneg[t], mx)
            I("v_mul_f32", lsum[t], lsum[t], ssum[t])
        I("s_cmp_lg_u32", s_first, 0)
        I("s_mov_b32", s_first, 0)
        I("s_cbranch_scc1", f"L_exret{sb}")
        for t, rs in tiles:
            for n in range(0, 32, 4):
                for r in range(4): I("v_accvgpr_read_b32", tmp[r], a(t * 32 + n + r))
                for r in range(4): I("v_mul_f32", tmp[r], tmp[r], ssum[t])
                for r in range(4): I("v_accvgpr_write_b32", a(t * 32 + n + r), tmp[r])
        I("s_nop", 3)
        I("s_branch", f"L_exret{sb}")

K2_DEPTH = 5
LDS2 = 4 * 28 * 1024
def gen_oproj(E):
    I = E.i
    sWS, sOUT = s(8, 4), s(12, 4)
    s_p, s_b, s_half, s_nb, s_w = s(16), s(17), s(18), s(19), s(20)
    s_t0, s_t1, s_t2 = s(21), s(22), s(23)
    s_o, s_wf = s(24), s(25)
    v_tid = v(0); v_l16 = v(1); v_l16b = v(2); tmp = [v(4 + n) for n in range(4)]
    def FB(slot, n): return v(8 + slot * 44 + n * 4, 4)
    def ACC(q, n): return a((q * 4 + n) * 4, 4)
    E.reset_hist(); E.vm = []; E.lgkm = []
    E.raw(".globl oproj_kernel\n.p2align 8\n.type oproj_kernel,@function\noproj_kernel:")
    I("s_cmp_ge_u32", s(2), 256)
    I("s_cbranch_scc1", "L_op_end")
    I("s_load_dwordx2", s(4, 2), s(0, 2), 80)
    I("s_load_dwordx2", s(6, 2), s(0, 2), 96)
    I("s_and_b32", s_t0, s(2), 7)
    I("s_lshr_b32", s_t1, s(2), 3)
    I("s_lshr_b32", s_p, s_t0, 2)
    I("s_and_b32", s_t0, s_t0, 3)
    I("s_lshl_b32", s_b, s_t0, 1)
    I("s_lshr_b32", s_t2, s_t1, 4)
    I("s_add_u32", s_b, s_b, s_t2)
    I("s_bfe_u32", s_half, s_t1, "0x10003")
    I("s_and_b32", s_nb, s_t1, 7)
    I("v_lshrrev_b32", tmp[0], 6, v_tid)
    I("s_nop", 0)
    I("v_readfirstlane_b32", s_w, tmp[0])
    I("v_and_b32", tmp[0], 63, v_tid)
    I("v_lshlrev_b32", v_l16, 4, tmp[0])
    I("v_add_u32", v_l16b, 4096, v_l16)
    I("s_lshl_b32", s_t0, s_p, 7)
    I("s_add_u32", s_t0, s_t0, s_w)
    I("s_mul_i32", s_t1, s_t0, 104)
    I("s_mul_i32", s_t2, s_b, 13)
    I("s_add_u32", s_t1, s_t1, s_t2)
    I("s_mul_i32", s_t2, s_half, 6)
    I("s_add_u32", s_t1, s_t1, s_t2)
    I("s_lshl_b32", s_o, s_t1, 10)
    I("s_lshl_b32", s_t1, s_t0, 5)
    I("s_lshl_b32", s_t2, s_nb, 2)
    I("s_add_u32", s_t1, s_t1, s_t2)
    I("s_lshl_b32", s_t1, s_t1, 10)
    I("s_add_u32", s_wf, s_t1, OFRAG_BYTES)
    E.waitcnt(lgkm=0)
    I("s_mov_b32", sWS[0], s(6)); I("s_mov_b32", sWS[1], s(7)); I("s_mov_b32", sWS[2], WS_USED); I("s_mov_b32", sWS[3], "0x00020000")
    I("s_mov_b32", sOUT[0], s(4)); I("s_mov_b32", sOUT[1], s(5)); I("s_mov_b32", sOUT[2], 8 * 208 * 1024 * 2); I("s_mov_b32", sOUT[3], "0x00020000")
    def loads(it):
        sl = it % K2_DEPTH
        for n in range(4):
            I("buffer_load_dwordx4", FB(sl, 7 + n), v_l16, sWS, s_wf, mods=f"offen offset:{1024*n}" if n else "offen", tag=f"k{it}")
        for q in range(7):
            vv = v_l16 if q < 4 else v_l16b
            o = 1024 * (q & 3)
            I("buffer_load_dwordx4", FB(sl, q), vv, sWS, s_o, mods=f"offen offset:{o}" if o else "offen", tag=f"k{it}")
        I("s_add_u32", s_o, s_o, 4 * 104 * 1024)
        I("s_add_u32", s_wf, s_wf, 4 * 32 * 1024)
    NIT = 32
    for it in range(K2_DEPTH - 1): loads(it)
    for it in range(NIT):
        if it + K2_DEPTH - 1 < NIT: loads(it + K2_DEPTH - 1)
        sl = it % K2_DEPTH
        for q in range(7):
            E.wait_vm(FB(sl, q), *[FB(sl, 7 + n) for n in range(4)])
            for n in range(4):
                I("v_mfma_f32_16x16x32_bf16", ACC(q, n), FB(sl, 7 + n), FB(sl, q), 0 if it == 0 else ACC(q, n))
    E.nop(10)
    I("s_mul_i32", s_t0, s_w, 28 * 1024)
    I("v_add_u32", tmp[0], s_t0, v_l16)
    for q in range(7):
        for n in range(4):
            I("ds_write_b128", tmp[0], ACC(q, n), mods=f"offset:{(q*4+n)*1024}")
    E.waitcnt(lgkm=0)
    I("s_barrier")
    I("s_lshl_b32", s_t0, s_w, 10)
    I("v_add_u32", tmp[0], s_t0, v_l16)
    I("v_add_u32", tmp[1], 56 * 1024, tmp[0])
    I("v_and_b32", tmp[2], 15, v_tid)
    I("v_lshlrev_b32", tmp[2], 11, tmp[2])
    I("v_bfe_u32", tmp[3], v_tid, 4, 2)
    I("v_lshl_add_u32", tmp[2], tmp[3], 3, tmp[2])
    I("s_mul_i32", s_t0, s_b, 208)
    I("s_mul_i32", s_t1, s_half, 96)
    I("s_add_u32", s_t0, s_t0, s_t1)
    I("s_lshl_b32", s_t0, s_t0, 11)
    I("s_lshl_b32", s_t1, s_p, 10)
    I("s_add_u32", s_t0, s_t0, s_t1)
    I("s_lshl_b32", s_t1, s_nb, 7)
    I("s_add_u32", s_t0, s_t0, s_t1)
    I("s_lshl_b32", s_t1, s_w, 5)
    I("s_add_u32", s_t0, s_t0, s_t1)
    def P(q, w_): return v(8 + (q * 4 + w_) * 4, 4)
    for q in range(7):
        for w_ in range(4):
            base = tmp[0] if w_ < 2 else tmp[1]
            I("ds_read_b128", P(q, w_), base, mods=f"offset:{(w_&1)*28*1024 + q*4096}")
        if q >= 2:
            reduce_store(E, q - 2, P, tmp, sOUT, s_t0, s_t1)
    for q in (5, 6): reduce_store(E, q, P, tmp, sOUT, s_t0, s_t1)
    E.label("L_op_end")
    I("s_endpgm")

def reduce_store(E, q, P, tmp, sOUT, s_t0, s_t1):
    I = E.i
    E.wait_lgkm(*[P(q, w_) for w_ in range(4)])
    for r in range(4):
        I("v_add_f32", P(q, 0)[r], P(q, 0)[r], P(q, 1)[r])
        I("v_add_f32", P(q, 2)[r], P(q, 2)[r], P(q, 3)[r])
    for r in range(4):
        I("v_add_f32", P(q, 0)[r], P(q, 0)[r], P(q, 2)[r])
    I("v_cvt_pk_bf16_f32", P(q, 0)[0], P(q, 0)[0], P(q, 0)[1])
    I("v_cvt_pk_bf16_f32", P(q, 0)[1], P(q, 0)[2], P(q, 0)[3])
    I("s_add_u32", s_t1, s_t0, q * 16 * 2048)
    I("buffer_store_dwordx2", P(q, 0).sub(0, 2), tmp[2], sOUT, s_t1, mods="offen")

def kd(name, nvgpr, accum, nsgpr):
    return f""".amdhsa_kernel {name}
  .amdhsa_next_free_vgpr {nvgpr}
  .amdhsa_next_free_sgpr {nsgpr}
  .amdhsa_accum_offset {accum}
  .amdhsa_group_segment_fixed_size 0
  .amdhsa_kernarg_size 104
  .amdhsa_user_sgpr_count 2
  .amdhsa_user_sgpr_kernarg_segment_ptr 1
  .amdhsa_system_sgpr_workgroup_id_x 1
.end_amdhsa_kernel
"""

def main(out):
    E = Emitter()
    hdr = open("cdna_kernels/" + NAME + ".s.ref").read().splitlines()
    head = [l for l in hdr if l.startswith(";") and "@launch" not in l and "Override launch" not in l and "grid=ceil" not in l]
    txt = "\n".join(head) + "\n"
    txt += f"; @launch kernel=attn_kernel grid=(512,1,1) block=(256,1,1) lds={LDS1}\n"
    txt += f"; @launch kernel=oproj_kernel grid=(256,1,1) block=(256,1,1) lds={LDS2}\n"
    txt += '.amdgcn_target "amdgcn-amd-amdhsa--gfx950"\n.text\n'
    gen_attn(E)
    c1 = dict(E.count); E.count = {}
    gen_oproj(E)
    txt += E.text()
    txt += '.section .rodata,"a"\n.p2align 6\n'
    txt += kd("attn_kernel", 256, 80, 96)
    txt += '.p2align 6\n'
    k2v = 8 + 44 * K2_DEPTH
    k2acc = (k2v + 3) // 4 * 4
    txt += kd("oproj_kernel", k2acc + 112, k2acc, 32)
    open(out, "w").write(txt)
    print("attn counts", c1, "oproj counts", E.count)
    if E.errors:
        print("\n".join(E.errors[:60])); print(len(E.errors), "errors"); sys.exit(1)

if __name__ == "__main__":
    main(sys.argv[1] if len(sys.argv) > 1 else "cdna_kernels/" + NAME + ".s")
```

```python
import sys, math
from asmdsl import *

NAME = "concat_heads__mha_block_cached__gqa_block_cached__near_ridge"
OFRAG_BYTES = 2 * 128 * 104 * 1024
WFRAG_BYTES = 2 * 128 * 32 * 1024
WS_USED = OFRAG_BYTES + WFRAG_BYTES
SLOT = 18432
DSLOT = 2 * SLOT
XBASE = 4 * SLOT
LDS1 = 81920
CSCALE = math.log2(math.e) / math.sqrt(128.0)
THRESH = float(2 ** 30)
import os
STAMP = int(os.environ.get("STAMP", "0"))
STAMP_BASE = 48 * 1024 * 1024
PF_XW = int(os.environ.get("PF_XW", "1"))
QDEPTH = int(os.environ.get("QDEPTH", "7"))
NT_KV = " nt" if int(os.environ.get("NT_KV", "1")) else ""
NT_Q = " nt" if int(os.environ.get("NT_Q", "0")) else ""
NT_O = " nt" if int(os.environ.get("NT_O", "0")) else ""
NT_K2 = " nt" if int(os.environ.get("NT_K2", "0")) else ""
NT_OUT = " nt" if int(os.environ.get("NT_OUT", "0")) else ""
PF_STEPS = tuple(int(x) for x in os.environ.get("PF_STEPS", "2,10").split(","))
QKEEP = int(os.environ.get("QKEEP", "2"))
ADEPTH = int(os.environ.get("ADEPTH", "5"))
PF_KV = int(os.environ.get("PF_KV", "0"))
class Stamper:
    def __init__(self, E, first_sgpr, maxn):
        self.E = E; self.n = 0; self.f = first_sgpr; self.maxn = maxn; self.names = []
    def __call__(self, name):
        if not STAMP: return
        assert self.n < self.maxn
        self.E.i("s_memrealtime" if name.startswith("RT") else "s_memtime", s(self.f + 2 * self.n, 2)); self.n += 1; self.names.append(name)
    def cond(self, name, s_j, val, lab):
        if STAMP != 1: return
        E = self.E
        E.i("s_cmp_eq_u32", s_j, val)
        E.i("s_cbranch_scc0", lab)
        self(name); E.waitcnt(lgkm=0)
        E.label(lab)
    def flush(self, srd, vt, vaddr, stmp, s_w, nwaves):
        if not STAMP: return
        E = self.E; I = E.i
        E.waitcnt(vm=0, lgkm=0)
        I("v_mov_b32", vt, 0)
        for k in range(self.n):
            I("v_writelane_b32", vt, s(self.f + 2 * k), k)
        I("s_mul_i32", stmp, s(2), nwaves)
        I("s_add_u32", stmp, stmp, s_w)
        I("s_lshl_b32", stmp, stmp, 8)
        I("s_add_u32", stmp, stmp, STAMP_BASE)
        I("v_lshrrev_b32", vaddr, 2, v(1))
        I("buffer_store_dword", vt, vaddr, srd, stmp, mods="offen")
        print("stamps:", self.names)

class Stream:
    def __init__(self, E, depth):
        self.E = E; self.depth = depth; self.items = []
    def frag(self, bufs, loads, mfmas, extra=()):
        self.items.append(dict(k="frag", bufs=bufs, loads=loads, mfmas=mfmas, extra=list(extra)))
    def mid(self, fn, on_pending=None):
        self.items.append(dict(k="mid", fn=fn, on_pending=on_pending))
    def lmid(self, fn):
        self.items.append(dict(k="lmid", fn=fn))
    def gate(self, fn, keep=2):
        self.items.append(dict(k="gate", fn=fn, keep=keep))
    def run(self):
        E = self.E; it = self.items; n = len(it); li = mi = 0
        def pend():
            return [x for x in it[mi:li] if x["k"] == "frag"]
        while mi < n:
            while li < n:
                x = it[li]; p = pend()
                if x["k"] == "frag":
                    if len(p) >= self.depth: break
                    rs = set()
                    for b in x["bufs"]: rs |= b.regs()
                    if any(rs & set().union(*[b.regs() for b in y["bufs"]]) for y in p): break
                    x["loads"](); li += 1
                elif x["k"] == "mid": li += 1
                elif x["k"] == "lmid":
                    x["fn"](); li += 1
                elif x["k"] == "gate":
                    if len(p) > x["keep"] or any(y["k"] == "mid" for y in it[mi:li]): break
                    x["fn"](); li += 1
            x = it[mi]
            if x["k"] == "frag":
                assert li > mi
                E.wait_lgkm(*(list(x["bufs"]) + x["extra"]))
                x["mfmas"]()
            elif x["k"] == "mid":
                if x["on_pending"]: x["on_pending"]([y for y in it[mi:li] if y["k"] == "frag"])
                x["fn"]()
            else:
                assert li > mi, "gate not executed"
            mi += 1

class Pool:
    def __init__(self, bufs): self.b = bufs; self.n = 0
    def get(self):
        r = self.b[self.n % len(self.b)]; self.n += 1; return r

def gen_attn(E):
    sX, sK, sV, sWQ, sWO, sWS = s(44, 4), s(48, 4), s(52, 4), s(56, 4), s(60, 4), s(64, 4)
    s_p, s_b, s_h, s_w = s(68), s(69), s(70), s(71)
    s_xt = [s(72), s(73), s(74), s(75)]
    s_m0w, s_sow = s(76), s(77)
    s_m0kv = s(78)
    s_kvoff = s(79)
    s_dnext = s(80)
    s_delta = s(81)
    s_c, s_thr = s(82), s(83)
    s_exact, s_first = s(84), s(85)
    s_j = s(86)
    s_t0, s_t1, s_t2 = s(87), s(88), s(89)
    s_w4608 = s_m0kv
    s_dlim = s(90)
    s_obase = s(91)
    s_wfbase = s(92)
    s_m0x = s(93)
    s_exm = s(94, 2)
    sPF = s(96, 4)
    s_pfoff = s(100)
    v_tid = v(0); v_l16 = v(1); v_dkv = v(2); v_dwq = v(3)
    vK = [v(4), v(5)]
    vV = [v(6), v(7), v(8), v(9)]
    vW = vV
    vW3 = [v(10), v(11)]
    MN = [v(12 + 4 * t, 4) for t in range(3)]
    T = [v(12 + n) for n in range(12)]
    mneg3 = v(24)
    lsum = [v(25 + t) for t in range(4)]
    ssum = [v(29 + t) for t in range(4)]
    tmp = [v(33), v(34), v(10), v(11)]
    g_keep = v(35)
    AF = [v(36 + 4 * n, 4) for n in range(4)]
    def S(t, k2): return v(52 + t * 8 + k2 * 4, 4)
    S3 = v(76, 4)
    v_x, v_xr, v_xr3, v_pf = v(76), v(77), v(78), v(79)
    v_dwo, v_sl = v(25), [v(26), v(27)]
    def O(t, dt): return a(t * 32 + dt * 4, 4)
    def Q(t, ks): return a(128 + t * 16 + ks * 4, 4)
    def Qacc(t, dt): return a(t * 32 + dt * 4, 4)
    def Qacc3(z): return a(96 + 4 * z, 4)
    def XF(buf, t): return a(104 + buf * 16 + t * 4, 4)
    SLB = [a(136, 4), a(140, 4)]
    QWQ = 8704; QBUF = 8704 + 13312

    I = E.i
    E.raw(".globl attn_kernel\n.p2align 8\n.type attn_kernel,@function\nattn_kernel:")
    I("s_cmp_ge_u32", s(2), 512)
    I("s_cbranch_scc1", "L_attn_end")
    I("s_load_dwordx16", s(16, 16), s(0, 2), 0)
    I("s_load_dwordx8", s(32, 8), s(0, 2), 64)
    I("s_load_dwordx2", s(40, 2), s(0, 2), 96)
    I("s_and_b32", s_t0, s(2), 7)
    I("s_lshr_b32", s_t1, s(2), 3)
    I("s_lshr_b32", s_p, s_t0, 2)
    I("s_and_b32", s_t0, s_t0, 3)
    I("s_lshl_b32", s_t0, s_t0, 3)
    I("s_and_b32", s_h, s_t1, 7)
    I("s_add_u32", s_h, s_h, s_t0)
    I("s_lshr_b32", s_b, s_t1, 3)
    lane, g_, r_, cc_ = T[0], T[1], T[2], T[3]
    A_, B_, C_, D_ = T[4], T[5], T[6], T[7]
    I("v_lshrrev_b32", A_, 6, v_tid)
    I("s_nop", 0)
    I("v_readfirstlane_b32", s_w, A_)
    I("v_and_b32", lane, 63, v_tid)
    I("v_lshrrev_b32", g_, 4, lane)
    I("v_bfe_u32", r_, lane, 2, 2)
    I("v_and_b32", cc_, 3, lane)
    I("v_lshlrev_b32", v_l16, 4, lane)
    I("v_mov_b32", g_keep, g_)
    I("v_and_b32", A_, 15, lane)
    I("v_lshlrev_b32", B_, 1, g_)
    I("v_xor_b32", A_, A_, B_)
    I("v_lshlrev_b32", A_, 4, A_)
    I("v_lshl_add_u32", v_dkv, g_, 8, A_)
    I("v_lshl_add_u32", v_dwq, g_, 13, A_)
    I("v_lshl_add_u32", v_dwo, g_, 10, A_)
    I("v_sub_u32", A_, 0, g_)
    I("v_and_b32", A_, 3, A_)
    I("v_xor_b32", A_, A_, cc_)
    I("v_lshlrev_b32", A_, 4, A_)
    I("v_lshrrev_b32", B_, 2, lane)
    I("v_lshl_add_u32", v_x, B_, 10, A_)
    I("v_sub_u32", A_, 0, r_)
    I("v_and_b32", A_, 3, A_)
    I("v_xor_b32", A_, A_, g_)
    I("v_lshlrev_b32", A_, 4, A_)
    I("v_and_b32", B_, 15, lane)
    I("v_lshl_add_u32", A_, B_, 6, A_)
    I("v_add_u32", v_xr3, QWQ + 12 * 1024, A_)
    I("s_mul_i32", s_t0, s_w, 3072)
    I("s_add_u32", s_t0, s_t0, QWQ)
    I("v_add_u32", v_xr, s_t0, A_)
    I("v_mul_u32_u24", A_, 1152, r_)
    I("v_lshl_add_u32", A_, cc_, 8, A_)
    I("v_and_b32", B_, 1, g_)
    I("v_lshl_add_u32", A_, B_, 4, A_)
    I("v_add_u32", A_, DSLOT, A_)
    I("v_lshrrev_b32", B_, 1, g_)
    for e in range(2):
        I("v_add_u32", C_, 2 * e, B_)
        I("v_xor_b32", C_, C_, cc_)
        I("v_lshl_add_u32", vK[e], C_, 5, A_)
    I("v_mul_u32_u24", A_, 2176, g_)
    I("v_lshl_add_u32", A_, r_, 8, A_)
    I("v_lshl_add_u32", A_, cc_, 3, A_)
    for x in range(4):
        I("v_xor_b32", C_, x, r_)
        I("v_lshl_add_u32", vW[x], C_, 5, A_)
    I("s_and_b32", s_t0, s_w, 1)
    I("s_lshl_b32", s_t0, s_t0, 1)
    I("s_lshr_b32", s_t1, s_w, 1)
    I("s_lshl_b32", s_t1, s_t1, 7)
    for z in range(2):
        I("s_add_u32", s_t2, s_t0, z)
        I("v_xor_b32", C_, s_t2, r_)
        I("v_lshl_add_u32", vW3[z], C_, 5, A_)
        I("v_add_u32", vW3[z], s_t1, vW3[z])
    I("v_lshlrev_b32", A_, 11, g_)
    I("v_lshl_add_u32", A_, r_, 8, A_)
    I("v_lshl_add_u32", A_, cc_, 3, A_)
    I("v_add_u32", A_, XBASE, A_)
    for z in range(2):
        I("s_add_u32", s_t2, s_t0, z)
        I("v_xor_b32", C_, s_t2, r_)
        I("v_lshl_add_u32", v_sl[z], C_, 5, A_)
        I("v_add_u32", v_sl[z], s_t1, v_sl[z])
    I("v_and_b32", A_, 255, v_tid)
    I("v_lshrrev_b32", B_, 3, A_)
    I("v_and_b32", C_, 7, A_)
    I("v_lshlrev_b32", C_, 7, C_)
    I("v_lshl_add_u32", T[8], B_, 10, C_)
    I("v_lshrrev_b32", B_, 1, A_)
    I("v_and_b32", C_, 1, A_)
    I("v_lshlrev_b32", C_, 7, C_)
    I("v_lshl_add_u32", T[9], B_, 13, C_)
    I("v_and_b32", C_, 127, v_tid)
    I("v_lshlrev_b32", v_pf, 7, C_)
    I("s_mul_i32", s_m0w, s_w, 2176)
    I("s_lshl_b32", s_sow, s_w, 16)
    I("s_mul_i32", s_m0x, s_w, 3072)
    I("s_lshl_b32", s_t0, s_w, 4)
    I("s_lshl_b64", s_exm, "0xffff", s_t0)
    I("s_mul_i32", s_m0kv, s_w, 4608)
    I("s_lshl_b32", s_kvoff, s_w, 12)
    I("s_mul_i32", s_t0, s_w, 48 * 1024)
    for t in range(3):
        I("s_add_u32", s_xt[t], s_t0, t * 16384)
    I("s_mov_b32", s_xt[3], 192 * 1024)
    I("s_mov_b32", s_c, f32hex(CSCALE))
    I("s_mov_b32", s_thr, f32hex(THRESH))
    E.waitcnt(lgkm=0)
    I("s_cmp_eq_u32", s_p, 0)
    I("s_cselect_b64", s(4, 2), s(16, 2), s(26, 2))
    I("s_cselect_b64", s(6, 2), s(18, 2), s(28, 2))
    I("s_cselect_b64", s(8, 2), s(20, 2), s(30, 2))
    I("s_cselect_b64", s(10, 2), s(22, 2), s(32, 2))
    I("s_cselect_b64", s(12, 2), s(24, 2), s(34, 2))
    def srd(dst, ptr, off_sreg, nrec):
        I("s_add_u32", dst[0], ptr[0], off_sreg)
        I("s_addc_u32", dst[1], ptr[1], 0)
        I("s_mov_b32", dst[2], nrec)
        I("s_mov_b32", dst[3], "0x00020000")
    I("s_mul_i32", s_t0, s_b, 212992)
    srd(sX, s(4, 2), s_t0, 212992)
    I("s_lshl_b32", s_t0, s_h, 8)
    I("s_sub_u32", s_t1, 4194304, s_t0)
    srd(sWQ, s(10, 2), s_t0, s_t1)

    def dma_q(st, tag):
        base = (st % 3) * QBUF
        fs = []
        for q in range(2):
            def f(q=q):
                I("s_add_u32", M0, s_m0w, base + 1024 * q)
                I("s_add_u32", s_t0, s_sow, st * 262144 + q * 32768)
                I("buffer_load_dwordx4", v_dwq, sWQ, s_t0, mods="offen" + NT_Q + " lds", tag=tag)
            fs.append(f)
        for t in range(3):
            def f(t=t):
                I("s_add_u32", M0, s_m0x, base + QWQ + 1024 * t)
                I("s_add_u32", s_t0, s_xt[t], st * 64)
                I("buffer_load_dwordx4", v_x, sX, s_t0, mods="offen" + NT_Q + " lds", tag=tag)
            fs.append(f)
        def f():
            I("s_mov_b32", M0, base + QWQ + 12 * 1024)
            I("s_add_u32", s_t0, s_xt[3], st * 64)
            I("s_mov_b64", EXEC, s_exm)
            I("buffer_load_dwordx4", v_x, sX, s_t0, mods="offen" + NT_Q + " lds", tag=tag)
            I("s_mov_b64", EXEC, -1)
        fs.append(f)
        return fs
    def dma_kv(sbase, cbase, tag, guard=False):
        fs = []
        for which, srd_ in ((0, sK), (1, sV)):
            for q in range(4):
                def f(which=which, srd_=srd_, q=q):
                    I("s_add_u32", M0, sbase, cbase + which * SLOT + 128 * q)
                    if guard:
                        I("s_cmp_ge_u32", s_j, 7)
                        I("s_cbranch_scc1", f"L_nd{which}{q}")
                    else: I("s_nop", 0)
                    I("buffer_load_dwordx4", v_dkv, srd_, s_kvoff, mods=(f"offen offset:{1024*q}" if q else "offen") + NT_KV + " lds", tag=tag)
                    if guard: E.label(f"L_nd{which}{q}")
                    if which == 1 and q == 3 and not guard: I("s_add_u32", s_kvoff, s_kvoff, 16384)
                fs.append(f)
        return fs
    def dma_slab(hf, tag):
        for q in range(2):
            I("s_lshl_b32", s_t0, s_w, 11)
            I("s_add_u32", M0, s_t0, XBASE + 1024 * q)
            I("s_lshl_b32", s_t0, s_w, 13)
            I("s_add_u32", s_t0, s_t0, q * 4096 + hf * 256)
            I("buffer_load_dwordx4", v_dwo, sWO, s_t0, mods="offen" + NT_KV + " lds", tag=tag)
    def slab_store(hf):
        for z in range(2):
            for hh in range(2):
                I("ds_read_b64_tr_b16", SLB[z].sub(2 * hh, 2), v_sl[z], mods=f"offset:{1024*hh}")
        for z in range(2):
            E.wait_lgkm(SLB[z])
            I("s_add_u32", s_t0, s_wfbase, (hf * 8 + z) * 1024)
            I("buffer_store_dwordx4", SLB[z], v_l16, sWS, s_t0, mods="offen" + NT_O)
        I("s_nop", 1)
    def kv_prefetch(vaddr):
        if not PF_KV: return
        I("buffer_load_dword", v_tid, vaddr, sPF, s_pfoff, mods="offen" + NT_KV, tag="pf")
        I("s_add_u32", s_pfoff, s_pfoff, 16384)

    ST_ = Stamper(E, 4, 6 if False else 20)
    for f in dma_q(0, "dma0"): f()
    if PF_XW:
        I("s_and_b32", s_t0, s_h, 7)
        I("s_mul_i32", s_t0, s_t0, 26 * 1024)
        I("s_lshl_b32", s_t1, s_b, 19)
        I("buffer_load_dword", v_tid, T[8], sX, s_t0, mods="offen" + NT_Q, tag="pf")
        I("buffer_load_dword", v_tid, T[9], sWQ, s_t1, mods="offen" + NT_Q, tag="pf")
    for f in dma_q(1, "dma1"): f()
    I("s_lshl_b32", s_t0, s_b, 5)
    I("s_add_u32", s_t0, s_t0, s_h)
    I("s_lshl_b32", s_t0, s_t0, 17)
    srd(sK, s(6, 2), s_t0, 131072)
    srd(sV, s(8, 2), s_t0, 131072)
    I("s_lshl_b32", s_t0, s_h, 2)
    I("s_lshr_b32", s_t1, s_b, 1)
    I("s_add_u32", s_t0, s_t0, s_t1)
    I("s_lshl_b32", s_t1, s_p, 7)
    I("s_add_u32", s_t1, s_t1, s_t0)
    I("s_lshl_b32", s_t1, s_t1, 5)
    I("s_and_b32", s_t2, s_b, 1)
    I("s_lshl_b32", s_t2, s_t2, 4)
    I("s_add_u32", s_t1, s_t1, s_t2)
    I("s_lshl_b32", s_t2, s_w, 1)
    I("s_add_u32", s_t1, s_t1, s_t2)
    I("s_lshl_b32", s_t1, s_t1, 10)
    I("s_add_u32", s_wfbase, s_t1, OFRAG_BYTES)
    I("s_lshl_b32", s_t0, s_t0, 15)
    I("s_and_b32", s_t1, s_b, 1)
    I("s_lshl_b32", s_t1, s_t1, 9)
    I("s_add_u32", s_t0, s_t0, s_t1)
    I("s_sub_u32", s_t1, 32768, s_t1)
    srd(sWO, s(12, 2), s_t0, s_t1)
    I("s_mov_b32", s_t0, 0)
    srd(sWS, s(40, 2), s_t0, WS_USED if not STAMP else 64 * 1024 * 1024)
    I("s_lshl_b32", s_t0, s_p, 7)
    I("s_lshl_b32", s_t1, s_h, 2)
    I("s_add_u32", s_t0, s_t0, s_t1)
    I("s_mul_i32", s_t0, s_t0, 104)
    I("s_mul_i32", s_t1, s_b, 13)
    I("s_add_u32", s_t0, s_t0, s_t1)
    I("s_lshl_b32", s_obase, s_t0, 10)
    I("s_cmp_lt_u32", s_w, 2)
    I("s_cselect_b64", s(96, 2), s(48, 2), s(52, 2))
    I("s_mov_b32", sPF[2], 131072)
    I("s_mov_b32", sPF[3], "0x00020000")
    I("s_mov_b32", s_pfoff, 0)
    dma_slab(0, "slab0")
    ST_("start")
    if STAMP == 3: ST_("RTstart")
    if STAMP: E.waitcnt(lgkm=0)

    QS = Stream(E, depth=QDEPTH)
    qpool = Pool(AF + [v(52 + 4 * n, 4) for n in range(6)])
    for st in range(16):
        cbase = (st % 3) * QBUF
        xb = st & 1
        def gate(st=st, cbase=cbase, xb=xb):
            E.comment(f"---- Q step {st}")
            E.wait_vm(tag=f"dma{st}")
            if st == 2: E.wait_vm(tag="slab0")
            if st == 6: E.wait_vm(tag="slab1")
            E.waitcnt(lgkm=0)
            I("s_barrier")
            if STAMP and st in (0, 1, 2, 8, 9):
                ST_(f"q{st}"); E.waitcnt(lgkm=0)
            for t in range(3):
                I("ds_read_b128", XF(xb, t), v_xr, mods=f"offset:{cbase+1024*t}")
            I("ds_read_b128", XF(xb, 3), v_xr3, mods=f"offset:{cbase}")
        QS.gate(gate, keep=QKEEP)
        extra = []
        if st == 3: extra.append(lambda: dma_slab(1, "slab1"))
        if st + 2 < 16: extra += dma_q(st + 2, f"dma{st+2}")
        if st == 15: extra += dma_kv(s_m0kv, DSLOT, "dma16")
        if st in PF_STEPS: extra.append(lambda: kv_prefetch(v_pf))
        for dt in range(8):
            b_ = qpool.get()
            def ld(b_=b_, dt=dt, cbase=cbase):
                for hh in range(2):
                    I("ds_read_b64_tr_b16", b_.sub(2 * hh, 2), vW[dt & 3], mods=f"offset:{cbase+1024*hh+128*(dt>>2)}")
            def mm(b_=b_, dt=dt, st=st, xb=xb, ex=(extra.pop(0) if extra else None)):
                for t in range(3):
                    I("v_mfma_f32_16x16x32_bf16", Qacc(t, dt), b_, XF(xb, t), 0 if st == 0 else Qacc(t, dt))
                if ex: ex()
            QS.frag([b_], ld, mm, extra=[XF(xb, t) for t in range(3)])
        for z in range(2):
            b_ = qpool.get()
            def ld(b_=b_, z=z, cbase=cbase):
                for hh in range(2):
                    I("ds_read_b64_tr_b16", b_.sub(2 * hh, 2), vW3[z], mods=f"offset:{cbase+1024*hh}")
            def mm(b_=b_, z=z, st=st, xb=xb, ex=(extra.pop(0) if extra else None)):
                I("v_mfma_f32_16x16x32_bf16", Qacc3(z), b_, XF(xb, 3), 0 if st == 0 else Qacc3(z))
                if ex: ex()
            QS.frag([b_], ld, mm, extra=[XF(xb, 3)])
        assert not extra
        if st == 2: QS.mid(lambda: slab_store(0))
        if st == 6: QS.mid(lambda: slab_store(1))
    QS.run()

    ST_("qend")
    if STAMP: E.waitcnt(lgkm=0)
    E.nop(8)
    def pack_pair(lo, hi, scale, R, T0, T1):
        for r in range(4): I("v_accvgpr_read_b32", T0[r], lo[r])
        for r in range(4): I("v_accvgpr_read_b32", T1[r], hi[r])
        for r in range(4): I("v_mul_f32", T0[r], scale, T0[r])
        for r in range(4): I("v_mul_f32", T1[r], scale, T1[r])
        I("v_cvt_pk_bf16_f32", R[0], T0[0], T0[1])
        I("v_cvt_pk_bf16_f32", R[1], T0[2], T0[3])
        I("v_cvt_pk_bf16_f32", R[2], T1[0], T1[1])
        I("v_cvt_pk_bf16_f32", R[3], T1[2], T1[3])
    def swap1(R):
        I("v_permlane32_swap_b32", R[0], R[2])
        I("v_permlane32_swap_b32", R[1], R[3])
    def swap2(R):
        I("v_permlane16_swap_b32", R[0], R[2])
        I("v_permlane16_swap_b32", R[1], R[3])
    def pack_seq(jobs):
        RB = [v(52 + 4 * n, 4) for n in range(3)]
        TB = [(AF[0], AF[1]), (AF[2], AF[3])]
        n = len(jobs)
        for k in range(n + 2):
            if k < n:
                lo, hi, sc, _ = jobs[k]
                pack_pair(lo, hi, sc, RB[k % 3], *TB[k % 2])
            elif k == n: I("s_nop", 1)
            if 0 <= k - 1 < n:
                if k >= n: I("s_nop", 1)
                swap2(RB[(k - 1) % 3]) if False else None
            if k < n:
                I("s_nop", 1)
                swap1(RB[k % 3])
            if 0 <= k - 1 < n:
                swap2(RB[(k - 1) % 3])
                jobs[k - 1][3](RB[(k - 1) % 3])
    jobs = []
    R3 = None
    jobs.append((Qacc3(0), Qacc3(1), s_c, lambda R: (I("s_lshl_b32", s_t0, s_w, 10), I("s_add_u32", s_t0, s_t0, XBASE),
                 I("v_add_u32", tmp[0], s_t0, v_l16), I("ds_write_b128", tmp[0], R))))
    for t in range(3):
        for k in range(4):
            def sink(R, t=t, k=k):
                for r in range(4): I("v_accvgpr_write_b32", Q(t, k)[r], R[r])
                for r in range(8): I("v_accvgpr_write_b32", a(t * 32 + k * 8 + r), 0)
            jobs.append((Qacc(t, 2 * k), Qacc(t, 2 * k + 1), s_c, sink))
    pack_seq(jobs)
    for n in range(96, 128): I("v_accvgpr_write_b32", a(n), 0)
    I("v_add_u32", v_dwq, XBASE, v_l16)
    I("v_lshlrev_b32", tmp[0], 10, g_keep)
    I("v_sub_u32", tmp[0], SLOT + DSLOT, tmp[0])
    for x in range(4): I("v_add_u32", vV[x], vV[x], tmp[0])
    for t in range(3):
        for r in range(4): I("v_mov_b32", MN[t][r], 0)
    I("v_mov_b32", mneg3, 0)
    for t in range(4): I("v_mov_b32", lsum[t], 0)
    I("s_mov_b32", s_exact, 1)
    I("s_mov_b32", s_first, 1)
    I("s_mov_b32", s_dlim, "0x7f800000")
    I("s_mov_b32", s_j, 0)
    I("s_mov_b32", s_dnext, 0)
    I("s_mov_b32", s_delta, -DSLOT)
    I("s_and_b32", s_t0, s_w, 1)
    I("s_lshl_b32", s_t0, s_t0, 13)
    I("s_add_u32", s_pfoff, s_pfoff, s_t0)
    ST_("att0")
    E.waitcnt(vm=0)

    E.label("L_blk")
    AS = Stream(E, depth=ADEPTH)
    redo_pending = {}
    def gate():
        E.waitcnt(vm=1 if PF_KV else 0, lgkm=0)
        I("s_barrier")
        ST_.cond("blk2top", s_j, 2, "L_nost2")
        I("s_add_u32", s_t1, s_m0kv, s_dnext)
    AS.gate(gate, keep=0)
    dmas = dma_kv(s_t1, 0, "kv", guard=True)
    def pf():
        I("v_lshlrev_b32", tmp[0], 3, v_l16)
        kv_prefetch(tmp[0])
    pool = Pool(AF)
    for sb in range(2):
        def lab(sb=sb):
            E.label(f"L_redo{sb}")
        def onp(p, sb=sb): redo_pending[sb] = p
        AS.mid(lab, on_pending=onp)
        n = 0
        for k2 in range(2):
            for ks in range(4):
                b_ = pool.get()
                def ld(b_=b_, k2=k2, ks=ks, sb=sb):
                    I("ds_read_b128", b_, vK[ks & 1], mods=f"offset:{4608*(2*sb+k2)+128*(ks>>1)}")
                def mm(b_=b_, k2=k2, ks=ks, ex=(dmas.pop(0) if (dmas and sb == 0) else None)):
                    for t in range(3):
                        I("v_mfma_f32_16x16x32_bf16", S(t, k2), b_, Q(t, ks), MN[t] if ks == 0 else S(t, k2))
                    if ex: ex()
                AS.frag([b_], ld, mm)
                if sb == 0 and n % 2 == 0:
                    ks3 = n // 2
                    b_ = pool.get(); qb = pool.get()
                    def ld(b_=b_, qb=qb, ks=ks3):
                        tv = tmp[2 + (ks & 1)]
                        I("v_add_u32", tv, s_w4608, vK[ks & 1])
                        I("ds_read_b128", b_, tv, mods=f"offset:{128*(ks>>1)}")
                        I("ds_read_b128", qb, v_dwq, mods=f"offset:{1024*ks}")
                    def mm(b_=b_, qb=qb, ks=ks3):
                        I("v_mfma_f32_16x16x32_bf16", S3, b_, qb, 0 if ks == 0 else S3)
                    AS.frag([b_, qb], ld, mm)
                n += 1
        def softmax(sb=sb):
            ST_.cond(f"qk{sb}", s_j, 2, f"L_sa{sb}")
            I("s_cmp_lg_u32", s_exact, 0)
            I("s_cbranch_scc1", f"L_exact{sb}")
            E.label(f"L_exret{sb}")
            tiles = [(t, [S(t, 0)[r] for r in range(4)] + [S(t, 1)[r] for r in range(4)]) for t in range(3)]
            if sb == 0:
                for r in range(4): I("v_add_f32", S3[r], S3[r], mneg3)
                tiles = [(3, [S3[r] for r in range(4)])] + tiles
            else: E.nop(2)
            for t, rs in tiles:
                for r in rs: I("v_exp_f32", r, r)
                I("v_add_f32", ssum[t], rs[0], rs[1])
                for r in rs[2:]: I("v_add_f32", ssum[t], ssum[t], r)
                for n in range(len(rs) // 2): I("v_cvt_pk_bf16_f32", rs[n], rs[2 * n], rs[2 * n + 1])
            I("v_max3_f32", tmp[0], ssum[0], ssum[1], ssum[2])
            if sb == 0: I("v_max_f32", tmp[0], tmp[0], ssum[3])
            I("v_cmp_lt_f32", VCC, s_thr, tmp[0])
            I("s_cbranch_vccnz", f"L_fix{sb}")
            E.label(f"L_fixret{sb}")
            I("s_mov_b32", s_exact, 0)
            for t, rs in tiles: I("v_add_f32", lsum[t], lsum[t], ssum[t])
            ST_.cond(f"sm{sb}", s_j, 2, f"L_sb{sb}")
        AS.mid(softmax)
        for dt in range(8):
            b_ = pool.get()
            def ld(b_=b_, dt=dt, sb=sb):
                for hh in range(2):
                    I("ds_read_b64_tr_b16", b_.sub(2 * hh, 2), vV[dt & 3], mods=f"offset:{4608*(2*sb+hh)+128*(dt>>2)}")
            def mm(b_=b_, dt=dt, ex=(pf if (sb == 1 and dt == 0) else None)):
                for t in range(3):
                    I("v_mfma_f32_16x16x32_bf16", O(t, dt), b_, S(t, 0), O(t, dt))
                if ex: ex()
            AS.frag([b_], ld, mm)
            if sb == 0 and dt % 2 == 1:
                b_ = pool.get()
                def ld(b_=b_, dt=dt):
                    for z in range(2):
                        d2 = dt - 1 + z
                        tv = tmp[2 + z]
                        I("v_add_u32", tv, s_w4608, vV[d2 & 3])
                        I("ds_read_b64_tr_b16", b_.sub(2 * z, 2), tv, mods=f"offset:{128*(d2>>2)}")
                def mm(b_=b_, dt=dt):
                    for z in range(2):
                        d2 = dt - 1 + z
                        I("v_mfma_f32_16x16x16_bf16", O(3, d2), b_.sub(2 * z, 2), S3.sub(0, 2), O(3, d2))
                AS.frag([b_], ld, mm)
    assert not dmas
    def toggles():
        for r in vK + vV: I("v_add_u32", r, s_delta, r)
    AS.mid(toggles)
    AS.run()
    I("s_add_u32", s_kvoff, s_kvoff, 16384)
    I("s_sub_u32", s_dnext, DSLOT, s_dnext)
    I("s_sub_u32", s_delta, 0, s_delta)
    I("s_add_u32", s_j, s_j, 1)
    I("s_cmp_lt_u32", s_j, 8)
    I("s_cbranch_scc1", "L_blk")

    ST_("epi")
    if STAMP: E.waitcnt(lgkm=0)
    def xreduce(r, op, tv):
        I("v_mov_b32", tv, r)
        I("s_nop", 1)
        I("v_permlane32_swap_b32", tv, r)
        I(op, r, r, tv)
        I("v_mov_b32", tv, r)
        I("s_nop", 1)
        I("v_permlane16_swap_b32", tv, r)
        I(op, r, r, tv)
    for t in (3, 0, 1, 2): xreduce(lsum[t], "v_add_f32", tmp[0])
    I("s_lshl_b32", s_t0, s_w, 13)
    I("s_add_u32", s_t0, s_t0, DSLOT)
    I("v_add_u32", tmp[1], s_t0, v_l16)
    for dt in range(8): I("ds_write_b128", tmp[1], O(3, dt), mods=f"offset:{dt*1024}")
    I("v_lshrrev_b32", tmp[2], 1, v_l16)
    I("v_add_u32", tmp[2], DSLOT, tmp[2])
    I("s_lshl_b32", s_t0, s_w, 9)
    I("v_add_u32", tmp[3], s_t0, tmp[2])
    I("v_mov_b32", v(30), mneg3)
    I("v_mov_b32", v(31), lsum[3])
    I("ds_write_b64", tmp[3], v(30, 2), mods="offset:32768")
    for t in range(3): I("v_rcp_f32", MN[t][0], lsum[t])
    E.waitcnt(lgkm=0)
    I("s_barrier")
    ST = [v(64 + 2 * w_, 2) for w_ in range(4)]
    for w_ in range(4): I("ds_read_b64", ST[w_], tmp[2], mods=f"offset:{32768+512*w_}")
    I("s_lshl_b32", s_t0, s_w, 11)
    I("s_add_u32", s_t0, s_t0, DSLOT)
    I("v_add_u32", tmp[1], s_t0, v_l16)
    PB = [[a(96 + 8 * w_ + 4 * z, 4) for z in range(2)] for w_ in range(4)]
    for w_ in range(4):
        for z in range(2): I("ds_read_b128", PB[w_][z], tmp[1], mods=f"offset:{8192*w_+1024*z}")
    I("s_mul_i32", s_t1, s_w, 3 * 1024)
    I("s_add_u32", s_t1, s_t1, s_obase)
    jobs = []
    for t in range(3):
        for k in range(4):
            def sink(R, t=t, k=k):
                I("s_add_u32", s_t0, s_t1, (k * 104 + t) * 1024)
                I("buffer_store_dwordx4", R, v_l16, sWS, s_t0, mods="offen" + NT_O)
            jobs.append((O(t, 2 * k), O(t, 2 * k + 1), MN[t][0], sink))
    pack_seq(jobs)
    E.waitcnt(lgkm=0)
    I("v_min_f32", tmp[0], ST[0][0], ST[1][0])
    I("v_min3_f32", tmp[0], tmp[0], ST[2][0], ST[3][0])
    for w_ in range(4): I("v_sub_f32", ST[w_][0], tmp[0], ST[w_][0])
    for w_ in range(4): I("v_exp_f32", ST[w_][0], ST[w_][0])
    I("s_nop", 0)
    I("v_mul_f32", tmp[0], ST[0][0], ST[0][1])
    for w_ in range(1, 4): I("v_fmac_f32", tmp[0], ST[w_][0], ST[w_][1])
    I("v_rcp_f32", tmp[0], tmp[0])
    I("s_nop", 0)
    for w_ in range(4): I("v_mul_f32", ST[w_][0], ST[w_][0], tmp[0])
    ACCv = [AF[0], AF[1]]
    for z in range(2):
        for r in range(4):
            for w_ in range(4):
                I("v_accvgpr_read_b32", tmp[1 + (w_ & 1)], PB[w_][z][r])
                if w_ == 0: I("v_mul_f32", ACCv[z][r], tmp[1], ST[0][0])
                else: I("v_fmac_f32", ACCv[z][r], tmp[1 + (w_ & 1)], ST[w_][0])
    R = AF[2]
    I("v_cvt_pk_bf16_f32", R[0], ACCv[0][0], ACCv[0][1])
    I("v_cvt_pk_bf16_f32", R[1], ACCv[0][2], ACCv[0][3])
    I("v_cvt_pk_bf16_f32", R[2], ACCv[1][0], ACCv[1][1])
    I("v_cvt_pk_bf16_f32", R[3], ACCv[1][2], ACCv[1][3])
    I("s_nop", 1)
    swap1(R)
    I("s_nop", 0)
    swap2(R)
    I("s_mul_i32", s_t0, s_w, 104 * 1024)
    I("s_add_u32", s_t0, s_t0, s_obase)
    I("s_add_u32", s_t0, s_t0, 12 * 1024)
    I("buffer_store_dwordx4", R, v_l16, sWS, s_t0, mods="offen" + NT_O)
    if STAMP:
        E.waitcnt(vm=0)
        ST_("end")
        if STAMP == 3: ST_("RTend")
        ST_.flush(sWS, v(52), v(53), s_t0, s_w, 4)
    E.label("L_attn_end")
    I("s_endpgm")

    for sb in range(2):
        E.reset_hist(); E.vm = []; E.lgkm = []
        E.label(f"L_fix{sb}")
        I("s_cmp_lg_u32", s_exact, 0)
        I("s_cbranch_scc1", f"L_fixret{sb}")
        I("s_mov_b32", s_exact, 1)
        E.waitcnt(lgkm=0)
        for fr in redo_pending[sb]: fr["loads"]()
        E.waitcnt(lgkm=0)
        I("s_branch", f"L_redo{sb}")
        E.label(f"L_exact{sb}")
        E.nop(16)
        mx = tmp[1]
        for t in range(3):
            rs = [S(t, 0)[r] for r in range(4)] + [S(t, 1)[r] for r in range(4)]
            I("v_max3_f32", mx, rs[0], rs[1], rs[2])
            I("v_max3_f32", mx, mx, rs[3], rs[4])
            I("v_max3_f32", mx, mx, rs[5], rs[6])
            I("v_max_f32", mx, mx, rs[7])
            xreduce(mx, "v_max_f32", tmp[0])
            I("v_sub_f32", mx, 0, mx)
            I("v_min_f32", mx, s_dlim, mx)
            for r in range(4): I("v_add_f32", MN[t][r], MN[t][r], mx)
            for r in rs: I("v_add_f32", r, r, mx)
            I("v_exp_f32", ssum[t], mx)
        if sb == 0:
            I("v_max3_f32", mx, S3[0], S3[1], S3[2])
            I("v_max_f32", mx, mx, S3[3])
            xreduce(mx, "v_max_f32", tmp[0])
            I("v_add_f32", mx, mx, mneg3)
            I("v_sub_f32", mx, 0, mx)
            I("v_min_f32", mx, s_dlim, mx)
            I("v_add_f32", mneg3, mneg3, mx)
            I("v_exp_f32", ssum[3], mx)
        I("s_mov_b32", s_dlim, 0)
        I("s_cmp_lg_u32", s_first, 0)
        I("s_mov_b32", s_first, 0)
        I("s_cbranch_scc1", f"L_exret{sb}")
        for t in (range(4) if sb == 0 else range(3)):
            I("v_mul_f32", lsum[t], lsum[t], ssum[t])
            for n in range(0, 32, 2):
                for r in range(2): I("v_accvgpr_read_b32", tmp[r], a(t * 32 + n + r))
                for r in range(2): I("v_mul_f32", tmp[r], tmp[r], ssum[t])
                for r in range(2): I("v_accvgpr_write_b32", a(t * 32 + n + r), tmp[r])
        I("s_nop", 3)
        I("s_branch", f"L_exret{sb}")

K2_DEPTH = 5
LDS2 = 4 * 28 * 1024
def gen_oproj(E):
    I = E.i
    sWS, sOUT = s(8, 4), s(12, 4)
    s_p, s_b, s_half, s_nb, s_w = s(16), s(17), s(18), s(19), s(20)
    s_t0, s_t1, s_t2 = s(21), s(22), s(23)
    s_o, s_wf = s(24), s(25)
    v_tid = v(0); v_l16 = v(1); v_l16b = v(2); tmp = [v(4 + n) for n in range(4)]
    def FB(slot, n): return v(8 + slot * 44 + n * 4, 4)
    def ACC(q, n): return a((q * 4 + n) * 4, 4)
    E.reset_hist(); E.vm = []; E.lgkm = []
    E.raw(".globl oproj_kernel\n.p2align 8\n.type oproj_kernel,@function\noproj_kernel:")
    I("s_cmp_ge_u32", s(2), 256)
    I("s_cbranch_scc1", "L_op_end")
    I("s_load_dwordx2", s(4, 2), s(0, 2), 80)
    I("s_load_dwordx2", s(6, 2), s(0, 2), 96)
    I("s_and_b32", s_t0, s(2), 7)
    I("s_lshr_b32", s_t1, s(2), 3)
    I("s_lshr_b32", s_p, s_t0, 2)
    I("s_and_b32", s_t0, s_t0, 3)
    I("s_lshl_b32", s_b, s_t0, 1)
    I("s_lshr_b32", s_t2, s_t1, 4)
    I("s_add_u32", s_b, s_b, s_t2)
    I("s_bfe_u32", s_half, s_t1, "0x10003")
    I("s_and_b32", s_nb, s_t1, 7)
    I("v_lshrrev_b32", tmp[0], 6, v_tid)
    I("s_nop", 0)
    I("v_readfirstlane_b32", s_w, tmp[0])
    I("v_and_b32", tmp[0], 63, v_tid)
    I("v_lshlrev_b32", v_l16, 4, tmp[0])
    I("v_add_u32", v_l16b, 4096, v_l16)
    I("s_lshl_b32", s_t0, s_p, 7)
    I("s_add_u32", s_t0, s_t0, s_w)
    I("s_mul_i32", s_t1, s_t0, 104)
    I("s_mul_i32", s_t2, s_b, 13)
    I("s_add_u32", s_t1, s_t1, s_t2)
    I("s_mul_i32", s_t2, s_half, 6)
    I("s_add_u32", s_t1, s_t1, s_t2)
    I("s_lshl_b32", s_o, s_t1, 10)
    I("s_lshl_b32", s_t1, s_t0, 5)
    I("s_lshl_b32", s_t2, s_nb, 2)
    I("s_add_u32", s_t1, s_t1, s_t2)
    I("s_lshl_b32", s_t1, s_t1, 10)
    I("s_add_u32", s_wf, s_t1, OFRAG_BYTES)
    E.waitcnt(lgkm=0)
    I("s_mov_b32", sWS[0], s(6)); I("s_mov_b32", sWS[1], s(7)); I("s_mov_b32", sWS[2], WS_USED); I("s_mov_b32", sWS[3], "0x00020000")
    I("s_mov_b32", sOUT[0], s(4)); I("s_mov_b32", sOUT[1], s(5)); I("s_mov_b32", sOUT[2], 8 * 208 * 1024 * 2); I("s_mov_b32", sOUT[3], "0x00020000")
    def loads(it):
        sl = it % K2_DEPTH
        for n in range(4):
            I("buffer_load_dwordx4", FB(sl, 7 + n), v_l16, sWS, s_wf, mods=(f"offen offset:{1024*n}" if n else "offen") + NT_K2, tag=f"k{it}")
        for q in range(7):
            vv = v_l16 if q < 4 else v_l16b
            o = 1024 * (q & 3)
            I("buffer_load_dwordx4", FB(sl, q), vv, sWS, s_o, mods=(f"offen offset:{o}" if o else "offen") + NT_K2, tag=f"k{it}")
        I("s_add_u32", s_o, s_o, 4 * 104 * 1024)
        I("s_add_u32", s_wf, s_wf, 4 * 32 * 1024)
    NIT = 32
    for it in range(K2_DEPTH - 1): loads(it)
    for it in range(NIT):
        if it + K2_DEPTH - 1 < NIT: loads(it + K2_DEPTH - 1)
        sl = it % K2_DEPTH
        for q in range(7):
            E.wait_vm(FB(sl, q), *[FB(sl, 7 + n) for n in range(4)])
            for n in range(4):
                I("v_mfma_f32_16x16x32_bf16", ACC(q, n), FB(sl, 7 + n), FB(sl, q), 0 if it == 0 else ACC(q, n))
    E.nop(10)
    I("s_mul_i32", s_t0, s_w, 28 * 1024)
    I("v_add_u32", tmp[0], s_t0, v_l16)
    for q in range(7):
        for n in range(4):
            I("ds_write_b128", tmp[0], ACC(q, n), mods=f"offset:{(q*4+n)*1024}")
    E.waitcnt(lgkm=0)
    I("s_barrier")
    I("s_lshl_b32", s_t0, s_w, 10)
    I("v_add_u32", tmp[0], s_t0, v_l16)
    I("v_add_u32", tmp[1], 56 * 1024, tmp[0])
    I("v_and_b32", tmp[2], 15, v_tid)
    I("v_lshlrev_b32", tmp[2], 11, tmp[2])
    I("v_bfe_u32", tmp[3], v_tid, 4, 2)
    I("v_lshl_add_u32", tmp[2], tmp[3], 3, tmp[2])
    I("s_mul_i32", s_t0, s_b, 208)
    I("s_mul_i32", s_t1, s_half, 96)
    I("s_add_u32", s_t0, s_t0, s_t1)
    I("s_lshl_b32", s_t0, s_t0, 11)
    I("s_lshl_b32", s_t1, s_p, 10)
    I("s_add_u32", s_t0, s_t0, s_t1)
    I("s_lshl_b32", s_t1, s_nb, 7)
    I("s_add_u32", s_t0, s_t0, s_t1)
    I("s_lshl_b32", s_t1, s_w, 5)
    I("s_add_u32", s_t0, s_t0, s_t1)
    def P(q, w_): return v(8 + (q * 4 + w_) * 4, 4)
    for q in range(7):
        for w_ in range(4):
            base = tmp[0] if w_ < 2 else tmp[1]
            I("ds_read_b128", P(q, w_), base, mods=f"offset:{(w_&1)*28*1024 + q*4096}")
        if q >= 2:
            reduce_store(E, q - 2, P, tmp, sOUT, s_t0, s_t1)
    for q in (5, 6): reduce_store(E, q, P, tmp, sOUT, s_t0, s_t1)
    E.label("L_op_end")
    I("s_endpgm")

def reduce_store(E, q, P, tmp, sOUT, s_t0, s_t1):
    I = E.i
    E.wait_lgkm(*[P(q, w_) for w_ in range(4)])
    for r in range(4):
        I("v_add_f32", P(q, 0)[r], P(q, 0)[r], P(q, 1)[r])
        I("v_add_f32", P(q, 2)[r], P(q, 2)[r], P(q, 3)[r])
    for r in range(4):
        I("v_add_f32", P(q, 0)[r], P(q, 0)[r], P(q, 2)[r])
    I("v_cvt_pk_bf16_f32", P(q, 0)[0], P(q, 0)[0], P(q, 0)[1])
    I("v_cvt_pk_bf16_f32", P(q, 0)[1], P(q, 0)[2], P(q, 0)[3])
    I("s_add_u32", s_t1, s_t0, q * 16 * 2048)
    I("buffer_store_dwordx2", P(q, 0).sub(0, 2), tmp[2], sOUT, s_t1, mods="offen" + NT_OUT)

def kd(name, nvgpr, accum, nsgpr):
    return f""".amdhsa_kernel {name}
  .amdhsa_next_free_vgpr {nvgpr}
  .amdhsa_next_free_sgpr {nsgpr}
  .amdhsa_accum_offset {accum}
  .amdhsa_group_segment_fixed_size 0
  .amdhsa_kernarg_size 104
  .amdhsa_user_sgpr_count 2
  .amdhsa_user_sgpr_kernarg_segment_ptr 1
  .amdhsa_system_sgpr_workgroup_id_x 1
.end_amdhsa_kernel
"""

def main(out):
    E = Emitter()
    hdr = open("cdna_kernels/" + NAME + ".s.ref").read().splitlines()
    head = [l for l in hdr if l.startswith(";") and "@launch" not in l and "Override launch" not in l and "grid=ceil" not in l]
    txt = "\n".join(head) + "\n"
    txt += f"; @launch kernel=attn_kernel grid=({os.environ.get('G1','512')},1,1) block=(256,1,1) lds={LDS1}\n"
    txt += f"; @launch kernel=oproj_kernel grid=(256,1,1) block=(256,1,1) lds={LDS2}\n"
    txt += '.amdgcn_target "amdgcn-amd-amdhsa--gfx950"\n.text\n'
    gen_attn(E)
    c1 = dict(E.count); E.count = {}
    gen_oproj(E)
    txt += E.text()
    txt += '.section .rodata,"a"\n.p2align 6\n'
    txt += kd("attn_kernel", 256, 80, 102)
    txt += '.p2align 6\n'
    k2v = 8 + 44 * K2_DEPTH
    k2acc = (k2v + 3) // 4 * 4
    txt += kd("oproj_kernel", k2acc + 112, k2acc, 32)
    open(out, "w").write(txt)
    print("attn counts", c1, "oproj counts", E.count)
    if E.errors:
        print("\n".join(E.errors[:60])); print(len(E.errors), "errors"); sys.exit(1)

if __name__ == "__main__":
    main(sys.argv[1] if len(sys.argv) > 1 else "cdna_kernels/" + NAME + ".s")
```

```python
import sys, math
from asmdsl import *

NAME = "concat_heads__mha_block_cached__gqa_block_cached__near_ridge"
OFRAG_BYTES = 2 * 128 * 104 * 1024
WFRAG_BYTES = 2 * 128 * 32 * 1024
WS_USED = OFRAG_BYTES + WFRAG_BYTES
SLOT = 18432
DSLOT = 2 * SLOT
XBASE = 4 * SLOT
LDS1 = 81920
CSCALE = math.log2(math.e) / math.sqrt(128.0)
THRESH = float(2 ** 30)
import os
STAMP = int(os.environ.get("STAMP", "0"))
STAMP_BASE = 48 * 1024 * 1024
PF_XW = int(os.environ.get("PF_XW", "1"))
QDEPTH = int(os.environ.get("QDEPTH", "7"))
NT_KV = " nt" if int(os.environ.get("NT_KV", "1")) else ""
NT_Q = " nt" if int(os.environ.get("NT_Q", "0")) else ""
NT_O = " nt" if int(os.environ.get("NT_O", "0")) else ""
NT_K2 = " nt" if int(os.environ.get("NT_K2", "0")) else ""
NT_OUT = " nt" if int(os.environ.get("NT_OUT", "0")) else ""
PF_STEPS = tuple(int(x) for x in os.environ.get("PF_STEPS", "2,10").split(","))
QKEEP = int(os.environ.get("QKEEP", "3"))
PRIO = os.environ.get("PRIO", "A")
QBURST = int(os.environ.get("QBURST", "2"))
ABURST = int(os.environ.get("ABURST", "99"))
ADEPTH = int(os.environ.get("ADEPTH", "5"))
PF_KV = int(os.environ.get("PF_KV", "0"))
class Stamper:
    def __init__(self, E, first_sgpr, maxn):
        self.E = E; self.n = 0; self.f = first_sgpr; self.maxn = maxn; self.names = []
    def __call__(self, name):
        if not STAMP: return
        assert self.n < self.maxn
        self.E.i("s_memrealtime" if name.startswith("RT") else "s_memtime", s(self.f + 2 * self.n, 2)); self.n += 1; self.names.append(name)
    def cond(self, name, s_j, val, lab):
        if STAMP != 1: return
        E = self.E
        E.i("s_cmp_eq_u32", s_j, val)
        E.i("s_cbranch_scc0", lab)
        self(name); E.waitcnt(lgkm=0)
        E.label(lab)
    def flush(self, srd, vt, vaddr, stmp, s_w, nwaves):
        if not STAMP: return
        E = self.E; I = E.i
        E.waitcnt(vm=0, lgkm=0)
        I("v_mov_b32", vt, 0)
        for k in range(self.n):
            I("v_writelane_b32", vt, s(self.f + 2 * k), k)
        I("s_mul_i32", stmp, s(2), nwaves)
        I("s_add_u32", stmp, stmp, s_w)
        I("s_lshl_b32", stmp, stmp, 8)
        I("s_add_u32", stmp, stmp, STAMP_BASE)
        I("v_lshrrev_b32", vaddr, 2, v(1))
        I("buffer_store_dword", vt, vaddr, srd, stmp, mods="offen")
        print("stamps:", self.names)

class Stream:
    def __init__(self, E, depth, burst=99):
        self.E = E; self.depth = depth; self.items = []; self.burst = burst
    def frag(self, bufs, loads, mfmas, extra=()):
        self.items.append(dict(k="frag", bufs=bufs, loads=loads, mfmas=mfmas, extra=list(extra)))
    def mid(self, fn, on_pending=None):
        self.items.append(dict(k="mid", fn=fn, on_pending=on_pending))
    def lmid(self, fn):
        self.items.append(dict(k="lmid", fn=fn))
    def gate(self, fn, keep=2):
        self.items.append(dict(k="gate", fn=fn, keep=keep))
    def run(self):
        E = self.E; it = self.items; n = len(it); li = mi = 0
        def pend():
            return [x for x in it[mi:li] if x["k"] == "frag"]
        while mi < n:
            nb = 0
            while li < n:
                x = it[li]; p = pend()
                if x["k"] == "frag":
                    if len(p) >= self.depth: break
                    if nb >= self.burst and len(p) > 0: break
                    nb += 1
                    rs = set()
                    for b in x["bufs"]: rs |= b.regs()
                    if any(rs & set().union(*[b.regs() for b in y["bufs"]]) for y in p): break
                    x["loads"](); li += 1
                elif x["k"] == "mid": li += 1
                elif x["k"] == "lmid":
                    x["fn"](); li += 1
                elif x["k"] == "gate":
                    if len(p) > x["keep"] or any(y["k"] == "mid" for y in it[mi:li]): break
                    x["fn"](); li += 1
            x = it[mi]
            if x["k"] == "frag":
                assert li > mi
                E.wait_lgkm(*(list(x["bufs"]) + x["extra"]))
                x["mfmas"]()
            elif x["k"] == "mid":
                if x["on_pending"]: x["on_pending"]([y for y in it[mi:li] if y["k"] == "frag"])
                x["fn"]()
            else:
                assert li > mi, "gate not executed"
            mi += 1

class Pool:
    def __init__(self, bufs): self.b = bufs; self.n = 0
    def get(self):
        r = self.b[self.n % len(self.b)]; self.n += 1; return r

def gen_attn(E):
    sX, sK, sV, sWQ, sWO, sWS = s(44, 4), s(48, 4), s(52, 4), s(56, 4), s(60, 4), s(64, 4)
    s_p, s_b, s_h, s_w = s(68), s(69), s(70), s(71)
    s_xt = [s(72), s(73), s(74), s(75)]
    s_m0w, s_sow = s(76), s(77)
    s_m0kv = s(78)
    s_kvoff = s(79)
    s_dnext = s(80)
    s_delta = s(81)
    s_c, s_thr = s(82), s(83)
    s_exact, s_first = s(84), s(85)
    s_j = s(86)
    s_t0, s_t1, s_t2 = s(87), s(88), s(89)
    s_w4608 = s_m0kv
    s_dlim = s(90)
    s_obase = s(91)
    s_wfbase = s(92)
    s_m0x = s(93)
    s_exm = s(94, 2)
    sPF = s(96, 4)
    s_pfoff = s(100)
    v_tid = v(0); v_l16 = v(1); v_dkv = v(2); v_dwq = v(3)
    vK = [v(4), v(5)]
    vV = [v(6), v(7), v(8), v(9)]
    vW = vV
    vW3 = [v(10), v(11)]
    MN = [v(12 + 4 * t, 4) for t in range(3)]
    T = [v(12 + n) for n in range(12)]
    mneg3 = v(24)
    lsum = [v(25 + t) for t in range(4)]
    ssum = [v(29 + t) for t in range(4)]
    tmp = [v(33), v(34), v(10), v(11)]
    g_keep = v(35)
    AF = [v(36 + 4 * n, 4) for n in range(4)]
    def S(t, k2): return v(52 + t * 8 + k2 * 4, 4)
    S3 = v(76, 4)
    v_x, v_xr, v_xr3, v_pf = v(76), v(77), v(78), v(79)
    v_dwo, v_sl = v(25), [v(26), v(27)]
    def O(t, dt): return a(t * 32 + dt * 4, 4)
    def Q(t, ks): return a(128 + t * 16 + ks * 4, 4)
    def Qacc(t, dt): return a(t * 32 + dt * 4, 4)
    def Qacc3(z): return a(96 + 4 * z, 4)
    def XF(buf, t): return a(104 + buf * 16 + t * 4, 4)
    SLB = [a(136, 4), a(140, 4)]
    QWQ = 8704; QBUF = 8704 + 13312

    I = E.i
    E.raw(".globl attn_kernel\n.p2align 8\n.type attn_kernel,@function\nattn_kernel:")
    I("s_cmp_ge_u32", s(2), 512)
    I("s_cbranch_scc1", "L_attn_end")
    I("s_load_dwordx16", s(16, 16), s(0, 2), 0)
    I("s_load_dwordx8", s(32, 8), s(0, 2), 64)
    I("s_load_dwordx2", s(40, 2), s(0, 2), 96)
    I("s_and_b32", s_t0, s(2), 7)
    I("s_lshr_b32", s_t1, s(2), 3)
    I("s_lshr_b32", s_p, s_t0, 2)
    I("s_and_b32", s_t0, s_t0, 3)
    I("s_lshl_b32", s_t0, s_t0, 3)
    I("s_and_b32", s_h, s_t1, 7)
    I("s_add_u32", s_h, s_h, s_t0)
    I("s_lshr_b32", s_b, s_t1, 3)
    lane, g_, r_, cc_ = T[0], T[1], T[2], T[3]
    A_, B_, C_, D_ = T[4], T[5], T[6], T[7]
    I("v_lshrrev_b32", A_, 6, v_tid)
    I("s_nop", 0)
    I("v_readfirstlane_b32", s_w, A_)
    I("v_and_b32", lane, 63, v_tid)
    I("v_lshrrev_b32", g_, 4, lane)
    I("v_bfe_u32", r_, lane, 2, 2)
    I("v_and_b32", cc_, 3, lane)
    I("v_lshlrev_b32", v_l16, 4, lane)
    I("v_mov_b32", g_keep, g_)
    I("v_and_b32", A_, 15, lane)
    I("v_lshlrev_b32", B_, 1, g_)
    I("v_xor_b32", A_, A_, B_)
    I("v_lshlrev_b32", A_, 4, A_)
    I("v_lshl_add_u32", v_dkv, g_, 8, A_)
    I("v_lshl_add_u32", v_dwq, g_, 13, A_)
    I("v_lshl_add_u32", v_dwo, g_, 10, A_)
    I("v_sub_u32", A_, 0, g_)
    I("v_and_b32", A_, 3, A_)
    I("v_xor_b32", A_, A_, cc_)
    I("v_lshlrev_b32", A_, 4, A_)
    I("v_lshrrev_b32", B_, 2, lane)
    I("v_lshl_add_u32", v_x, B_, 10, A_)
    I("v_sub_u32", A_, 0, r_)
    I("v_and_b32", A_, 3, A_)
    I("v_xor_b32", A_, A_, g_)
    I("v_lshlrev_b32", A_, 4, A_)
    I("v_and_b32", B_, 15, lane)
    I("v_lshl_add_u32", A_, B_, 6, A_)
    I("v_add_u32", v_xr3, QWQ + 12 * 1024, A_)
    I("s_mul_i32", s_t0, s_w, 3072)
    I("s_add_u32", s_t0, s_t0, QWQ)
    I("v_add_u32", v_xr, s_t0, A_)
    I("v_mul_u32_u24", A_, 1152, r_)
    I("v_lshl_add_u32", A_, cc_, 8, A_)
    I("v_and_b32", B_, 1, g_)
    I("v_lshl_add_u32", A_, B_, 4, A_)
    I("v_add_u32", A_, DSLOT, A_)
    I("v_lshrrev_b32", B_, 1, g_)
    for e in range(2):
        I("v_add_u32", C_, 2 * e, B_)
        I("v_xor_b32", C_, C_, cc_)
        I("v_lshl_add_u32", vK[e], C_, 5, A_)
    I("v_mul_u32_u24", A_, 2176, g_)
    I("v_lshl_add_u32", A_, r_, 8, A_)
    I("v_lshl_add_u32", A_, cc_, 3, A_)
    for x in range(4):
        I("v_xor_b32", C_, x, r_)
        I("v_lshl_add_u32", vW[x], C_, 5, A_)
    I("s_and_b32", s_t0, s_w, 1)
    I("s_lshl_b32", s_t0, s_t0, 1)
    I("s_lshr_b32", s_t1, s_w, 1)
    I("s_lshl_b32", s_t1, s_t1, 7)
    for z in range(2):
        I("s_add_u32", s_t2, s_t0, z)
        I("v_xor_b32", C_, s_t2, r_)
        I("v_lshl_add_u32", vW3[z], C_, 5, A_)
        I("v_add_u32", vW3[z], s_t1, vW3[z])
    I("v_lshlrev_b32", A_, 10, g_)
    I("v_lshl_add_u32", A_, r_, 8, A_)
    I("v_lshl_add_u32", A_, cc_, 3, A_)
    I("v_add_u32", A_, XBASE, A_)
    for z in range(2):
        I("s_add_u32", s_t2, s_t0, z)
        I("v_xor_b32", C_, s_t2, r_)
        I("v_lshl_add_u32", v_sl[z], C_, 5, A_)
        I("v_add_u32", v_sl[z], s_t1, v_sl[z])
    I("v_and_b32", A_, 255, v_tid)
    I("v_lshrrev_b32", B_, 3, A_)
    I("v_and_b32", C_, 7, A_)
    I("v_lshlrev_b32", C_, 7, C_)
    I("v_lshl_add_u32", T[8], B_, 10, C_)
    I("v_lshrrev_b32", B_, 1, A_)
    I("v_and_b32", C_, 1, A_)
    I("v_lshlrev_b32", C_, 7, C_)
    I("v_lshl_add_u32", T[9], B_, 13, C_)
    I("v_and_b32", C_, 127, v_tid)
    I("v_lshlrev_b32", v_pf, 7, C_)
    I("s_mul_i32", s_m0w, s_w, 2176)
    I("s_lshl_b32", s_sow, s_w, 16)
    I("s_mul_i32", s_m0x, s_w, 3072)
    I("s_lshl_b32", s_t0, s_w, 4)
    I("s_lshl_b64", s_exm, "0xffff", s_t0)
    I("s_mul_i32", s_m0kv, s_w, 4608)
    I("s_lshl_b32", s_kvoff, s_w, 12)
    I("s_mul_i32", s_t0, s_w, 48 * 1024)
    for t in range(3):
        I("s_add_u32", s_xt[t], s_t0, t * 16384)
    I("s_mov_b32", s_xt[3], 192 * 1024)
    I("s_mov_b32", s_c, f32hex(CSCALE))
    I("s_mov_b32", s_thr, f32hex(THRESH))
    E.waitcnt(lgkm=0)
    I("s_cmp_eq_u32", s_p, 0)
    I("s_cselect_b64", s(4, 2), s(16, 2), s(26, 2))
    I("s_cselect_b64", s(6, 2), s(18, 2), s(28, 2))
    I("s_cselect_b64", s(8, 2), s(20, 2), s(30, 2))
    I("s_cselect_b64", s(10, 2), s(22, 2), s(32, 2))
    I("s_cselect_b64", s(12, 2), s(24, 2), s(34, 2))
    def srd(dst, ptr, off_sreg, nrec):
        I("s_add_u32", dst[0], ptr[0], off_sreg)
        I("s_addc_u32", dst[1], ptr[1], 0)
        I("s_mov_b32", dst[2], nrec)
        I("s_mov_b32", dst[3], "0x00020000")
    I("s_mul_i32", s_t0, s_b, 212992)
    srd(sX, s(4, 2), s_t0, 212992)
    I("s_lshl_b32", s_t0, s_h, 8)
    I("s_sub_u32", s_t1, 4194304, s_t0)
    srd(sWQ, s(10, 2), s_t0, s_t1)

    def dma_q(st, tag):
        base = (st % 3) * QBUF
        fs = []
        for q in range(2):
            def f(q=q):
                I("s_add_u32", M0, s_m0w, base + 1024 * q)
                I("s_add_u32", s_t0, s_sow, st * 262144 + q * 32768)
                I("buffer_load_dwordx4", v_dwq, sWQ, s_t0, mods="offen" + NT_Q + " lds", tag=tag)
            fs.append(f)
        for t in range(3):
            def f(t=t):
                I("s_add_u32", M0, s_m0x, base + QWQ + 1024 * t)
                I("s_add_u32", s_t0, s_xt[t], st * 64)
                I("buffer_load_dwordx4", v_x, sX, s_t0, mods="offen" + NT_Q + " lds", tag=tag)
            fs.append(f)
        def f():
            I("s_mov_b32", M0, base + QWQ + 12 * 1024)
            I("s_add_u32", s_t0, s_xt[3], st * 64)
            I("s_mov_b64", EXEC, s_exm)
            I("buffer_load_dwordx4", v_x, sX, s_t0, mods="offen" + NT_Q + " lds", tag=tag)
            I("s_mov_b64", EXEC, -1)
        fs.append(f)
        return fs
    def dma_kv(sbase, cbase, tag, guard=False, noinc=False):
        fs = []
        for which, srd_ in ((0, sK), (1, sV)):
            for q in range(4):
                def f(which=which, srd_=srd_, q=q):
                    I("s_add_u32", M0, sbase, cbase + which * SLOT + 128 * q)
                    if guard:
                        I("s_cmp_ge_u32", s_j, 7)
                        I("s_cbranch_scc1", f"L_nd{which}{q}")
                    else: I("s_nop", 0)
                    I("buffer_load_dwordx4", v_dkv, srd_, s_kvoff, mods=(f"offen offset:{1024*q}" if q else "offen") + NT_KV + " lds", tag=tag)
                    if guard: E.label(f"L_nd{which}{q}")
                    if which == 1 and q == 3 and not noinc: I("s_add_u32", s_kvoff, s_kvoff, 16384)
                fs.append(f)
        return fs
    def dma_slab(hf, tag):
        for q in range(2):
            I("s_lshl_b32", s_t0, s_w, 11)
            I("s_add_u32", M0, s_t0, XBASE + 1024 * q)
            I("s_lshl_b32", s_t0, s_w, 13)
            I("s_add_u32", s_t0, s_t0, q * 4096 + hf * 256)
            I("buffer_load_dwordx4", v_dwo, sWO, s_t0, mods="offen" + NT_KV + " lds", tag=tag)
    def slab_store(hf):
        for z in range(2):
            for hh in range(2):
                I("ds_read_b64_tr_b16", SLB[z].sub(2 * hh, 2), v_sl[z], mods=f"offset:{4096*hh}")
        for z in range(2):
            E.wait_lgkm(SLB[z])
            I("s_add_u32", s_t0, s_wfbase, (hf * 8 + z) * 1024)
            I("buffer_store_dwordx4", SLB[z], v_l16, sWS, s_t0, mods="offen" + NT_O)
        I("s_nop", 1)
    def kv_prefetch(vaddr):
        if not PF_KV: return
        I("buffer_load_dword", v_tid, vaddr, sPF, s_pfoff, mods="offen" + NT_KV, tag="pf")
        I("s_add_u32", s_pfoff, s_pfoff, 16384)

    ST_ = Stamper(E, 4, 6 if False else 20)
    for f in dma_q(0, "dma0"): f()
    if PF_XW:
        I("s_and_b32", s_t0, s_h, 7)
        I("s_mul_i32", s_t0, s_t0, 26 * 1024)
        I("s_lshl_b32", s_t1, s_b, 19)
        I("buffer_load_dword", v_tid, T[8], sX, s_t0, mods="offen" + NT_Q, tag="pf")
        I("buffer_load_dword", v_tid, T[9], sWQ, s_t1, mods="offen" + NT_Q, tag="pf")
    for f in dma_q(1, "dma1"): f()
    I("s_lshl_b32", s_t0, s_b, 5)
    I("s_add_u32", s_t0, s_t0, s_h)
    I("s_lshl_b32", s_t0, s_t0, 17)
    srd(sK, s(6, 2), s_t0, 131072)
    srd(sV, s(8, 2), s_t0, 131072)
    I("s_lshl_b32", s_t0, s_h, 2)
    I("s_lshr_b32", s_t1, s_b, 1)
    I("s_add_u32", s_t0, s_t0, s_t1)
    I("s_lshl_b32", s_t1, s_p, 7)
    I("s_add_u32", s_t1, s_t1, s_t0)
    I("s_lshl_b32", s_t1, s_t1, 5)
    I("s_and_b32", s_t2, s_b, 1)
    I("s_lshl_b32", s_t2, s_t2, 4)
    I("s_add_u32", s_t1, s_t1, s_t2)
    I("s_lshl_b32", s_t2, s_w, 1)
    I("s_add_u32", s_t1, s_t1, s_t2)
    I("s_lshl_b32", s_t1, s_t1, 10)
    I("s_add_u32", s_wfbase, s_t1, OFRAG_BYTES)
    I("s_lshl_b32", s_t0, s_t0, 15)
    I("s_and_b32", s_t1, s_b, 1)
    I("s_lshl_b32", s_t1, s_t1, 9)
    I("s_add_u32", s_t0, s_t0, s_t1)
    I("s_sub_u32", s_t1, 32768, s_t1)
    srd(sWO, s(12, 2), s_t0, s_t1)
    I("s_mov_b32", s_t0, 0)
    srd(sWS, s(40, 2), s_t0, WS_USED if not STAMP else 64 * 1024 * 1024)
    I("s_lshl_b32", s_t0, s_p, 7)
    I("s_lshl_b32", s_t1, s_h, 2)
    I("s_add_u32", s_t0, s_t0, s_t1)
    I("s_mul_i32", s_t0, s_t0, 104)
    I("s_mul_i32", s_t1, s_b, 13)
    I("s_add_u32", s_t0, s_t0, s_t1)
    I("s_lshl_b32", s_obase, s_t0, 10)
    I("s_cmp_lt_u32", s_w, 2)
    I("s_cselect_b64", s(96, 2), s(48, 2), s(52, 2))
    I("s_mov_b32", sPF[2], 131072)
    I("s_mov_b32", sPF[3], "0x00020000")
    I("s_mov_b32", s_pfoff, 0)
    dma_slab(0, "slab0")
    ST_("start")
    if STAMP == 3: ST_("RTstart")
    if STAMP: E.waitcnt(lgkm=0)

    def setprio(on, lab):
        I("s_cmp_ge_u32", s(2), 256)
        I("s_cbranch_scc0", lab)
        I("s_setprio", 2 if on else 0)
        E.label(lab)
    if "Q" in PRIO: setprio(True, "L_pr0")
    QS = Stream(E, depth=QDEPTH, burst=QBURST)
    qpool = Pool(AF + [v(52 + 4 * n, 4) for n in range(6)])
    for st in range(16):
        cbase = (st % 3) * QBUF
        xb = st & 1
        def gate(st=st, cbase=cbase, xb=xb):
            E.comment(f"---- Q step {st}")
            E.wait_vm(tag=f"dma{st}")
            if st == 2: E.wait_vm(tag="slab0")
            if st == 6: E.wait_vm(tag="slab1")
            E.waitcnt(lgkm=0)
            I("s_barrier")
            if STAMP and st in (0, 1, 2, 8, 9):
                ST_(f"q{st}"); E.waitcnt(lgkm=0)
            I("ds_read_b128", XF(xb, 3), v_xr3, mods=f"offset:{cbase}")
            for t in range(3):
                I("ds_read_b128", XF(xb, t), v_xr, mods=f"offset:{cbase+1024*t}")
        QS.gate(gate, keep=QKEEP)
        extra = []
        if st == 3: extra.append(lambda: dma_slab(1, "slab1"))
        if st + 2 < 16: extra += dma_q(st + 2, f"dma{st+2}")
        if st == 15: extra += dma_kv(s_m0kv, DSLOT, "dma16")
        if st in PF_STEPS: extra.append(lambda: kv_prefetch(v_pf))
        order = [("t3", 0), ("r", 0), ("t3", 1)] + [("r", dt) for dt in range(1, 8)]
        for kind, idx in order:
            b_ = qpool.get()
            if kind == "r":
                dt = idx
                def ld(b_=b_, dt=dt, cbase=cbase):
                    for hh in range(2):
                        I("ds_read_b64_tr_b16", b_.sub(2 * hh, 2), vW[dt & 3], mods=f"offset:{cbase+1024*hh+128*(dt>>2)}")
                def mm(b_=b_, dt=dt, st=st, xb=xb, ex=(extra.pop(0) if extra else None)):
                    for t in range(3):
                        I("v_mfma_f32_16x16x32_bf16", Qacc(t, dt), b_, XF(xb, t), 0 if st == 0 else Qacc(t, dt))
                    if ex: ex()
                QS.frag([b_], ld, mm, extra=[XF(xb, t) for t in range(3)])
            else:
                z = idx
                def ld(b_=b_, z=z, cbase=cbase):
                    for hh in range(2):
                        I("ds_read_b64_tr_b16", b_.sub(2 * hh, 2), vW3[z], mods=f"offset:{cbase+1024*hh}")
                def mm(b_=b_, z=z, st=st, xb=xb, ex=(extra.pop(0) if extra else None)):
                    I("v_mfma_f32_16x16x32_bf16", Qacc3(z), b_, XF(xb, 3), 0 if st == 0 else Qacc3(z))
                    if ex: ex()
                QS.frag([b_], ld, mm, extra=[XF(xb, 3)])
        assert not extra
        if st == 2: QS.mid(lambda: slab_store(0))
        if st == 6: QS.mid(lambda: slab_store(1))
    QS.run()

    ST_("qend")
    if STAMP: E.waitcnt(lgkm=0)
    E.nop(8)
    def pack_pair(lo, hi, scale, R, T0, T1):
        for r in range(4): I("v_accvgpr_read_b32", T0[r], lo[r])
        for r in range(4): I("v_accvgpr_read_b32", T1[r], hi[r])
        for r in range(4): I("v_mul_f32", T0[r], scale, T0[r])
        for r in range(4): I("v_mul_f32", T1[r], scale, T1[r])
        I("v_cvt_pk_bf16_f32", R[0], T0[0], T0[1])
        I("v_cvt_pk_bf16_f32", R[1], T0[2], T0[3])
        I("v_cvt_pk_bf16_f32", R[2], T1[0], T1[1])
        I("v_cvt_pk_bf16_f32", R[3], T1[2], T1[3])
    def swap1(R):
        I("v_permlane32_swap_b32", R[0], R[2])
        I("v_permlane32_swap_b32", R[1], R[3])
    def swap2(R):
        I("v_permlane16_swap_b32", R[0], R[2])
        I("v_permlane16_swap_b32", R[1], R[3])
    def pack_seq(jobs, swaps=True):
        RB = [v(52 + 4 * n, 4) for n in range(3)]
        TB = [(AF[0], AF[1]), (AF[2], AF[3])]
        n = len(jobs)
        if not swaps:
            for k in range(n):
                lo, hi, sc, sink = jobs[k]
                pack_pair(lo, hi, sc, RB[k % 3], *TB[k % 2])
                sink(RB[k % 3])
            return
        for k in range(n + 1):
            if k < n:
                lo, hi, sc, _ = jobs[k]
                pack_pair(lo, hi, sc, RB[k % 3], *TB[k % 2])
            if 0 <= k - 1 < n:
                if k >= n: I("s_nop", 1)
                swap2(RB[(k - 1) % 3])
                jobs[k - 1][3](RB[(k - 1) % 3])
            elif k == 0: I("s_nop", 1)
            if k < n:
                swap1(RB[k % 3])
    jobs = []
    R3 = None
    jobs.append((Qacc3(0), Qacc3(1), s_c, lambda R: (I("s_lshl_b32", s_t0, s_w, 10), I("s_add_u32", s_t0, s_t0, XBASE),
                 I("v_add_u32", tmp[0], s_t0, v_l16), I("ds_write_b128", tmp[0], R))))
    for t in range(3):
        for k in range(4):
            def sink(R, t=t, k=k):
                for r in range(4): I("v_accvgpr_write_b32", Q(t, k)[r], R[r])
            jobs.append((Qacc(t, 2 * k), Qacc(t, 2 * k + 1), s_c, sink))
    pack_seq(jobs)
    I("v_add_u32", v_dwq, XBASE, v_l16)
    I("v_lshlrev_b32", tmp[0], 10, g_keep)
    I("v_sub_u32", tmp[0], SLOT + DSLOT, tmp[0])
    for x in range(4): I("v_add_u32", vV[x], vV[x], tmp[0])
    for t in range(3):
        for r in range(4): I("v_mov_b32", MN[t][r], 0)
    I("v_mov_b32", mneg3, 0)
    for t in range(4): I("v_mov_b32", lsum[t], 0)
    I("s_mov_b32", s_exact, 1)
    I("s_mov_b32", s_first, 1)
    I("s_mov_b32", s_dlim, "0x7f800000")
    I("s_mov_b32", s_j, 0)
    I("s_mov_b32", s_dnext, 0)
    I("s_mov_b32", s_delta, -DSLOT)
    I("s_and_b32", s_t0, s_w, 1)
    I("s_lshl_b32", s_t0, s_t0, 13)
    I("s_add_u32", s_pfoff, s_pfoff, s_t0)
    ST_("att0")
    if "A" in PRIO and "Q" not in PRIO: setprio(True, "L_pr1")
    if "Q" in PRIO and "A" not in PRIO: setprio(False, "L_pr1")

    redo_pending = {}
    def block(kind):
        sfx = kind
        first = kind == "A"; last = kind == "C"
        AS = Stream(E, depth=ADEPTH, burst=ABURST)
        def gate():
            E.waitcnt(vm=0, lgkm=0)
            I("s_barrier")
            if not last: I("s_add_u32", s_t1, s_m0kv, s_dnext)
        AS.gate(gate, keep=0)
        dmas = [] if last else dma_kv(s_t1, 0, "kv", noinc=True)
        pool = Pool(AF)
        for sb in range(2):
            def lab(sb=sb):
                E.label(f"L_redo{sb}{sfx}")
            def onp(p, sb=sb): redo_pending[(sb, sfx)] = p
            AS.mid(lab, on_pending=onp)
            n = 0
            for k2 in range(2):
                for ks in range(4):
                    b_ = pool.get()
                    def ld(b_=b_, k2=k2, ks=ks, sb=sb):
                        I("ds_read_b128", b_, vK[ks & 1], mods=f"offset:{4608*(2*sb+k2)+128*(ks>>1)}")
                    def mm(b_=b_, k2=k2, ks=ks, ex=(dmas.pop(0) if (dmas and sb == 0) else None)):
                        for t in range(3):
                            I("v_mfma_f32_16x16x32_bf16", S(t, k2), b_, Q(t, ks), MN[t] if ks == 0 else S(t, k2))
                        if ex: ex()
                    AS.frag([b_], ld, mm)
                    if sb == 0 and n % 2 == 0:
                        ks3 = n // 2
                        b_ = pool.get(); qb = pool.get()
                        def ld(b_=b_, qb=qb, ks=ks3):
                            tv = tmp[2 + (ks & 1)]
                            I("v_add_u32", tv, s_w4608, vK[ks & 1])
                            I("ds_read_b128", b_, tv, mods=f"offset:{128*(ks>>1)}")
                            I("ds_read_b128", qb, v_dwq, mods=f"offset:{1024*ks}")
                        def mm(b_=b_, qb=qb, ks=ks3):
                            I("v_mfma_f32_16x16x32_bf16", S3, b_, qb, 0 if ks == 0 else S3)
                        AS.frag([b_, qb], ld, mm)
                    n += 1
            def softmax(sb=sb):
                I("s_cmp_lg_u32", s_exact, 0)
                I("s_cbranch_scc1", f"L_exact{sb}{sfx}")
                E.label(f"L_exret{sb}{sfx}")
                tiles = [(t, [S(t, 0)[r] for r in range(4)] + [S(t, 1)[r] for r in range(4)]) for t in range(3)]
                if sb == 0:
                    for r in range(4): I("v_add_f32", S3[r], S3[r], mneg3)
                    tiles = [(3, [S3[r] for r in range(4)])] + tiles
                else: E.nop(2)
                for t, rs in tiles:
                    for r in rs: I("v_exp_f32", r, r)
                    I("v_add_f32", ssum[t], rs[0], rs[1])
                    for r in rs[2:]: I("v_add_f32", ssum[t], ssum[t], r)
                    for n in range(len(rs) // 2): I("v_cvt_pk_bf16_f32", rs[n], rs[2 * n], rs[2 * n + 1])
                I("v_max3_f32", tmp[0], ssum[0], ssum[1], ssum[2])
                if sb == 0: I("v_max_f32", tmp[0], tmp[0], ssum[3])
                I("v_cmp_lt_f32", VCC, s_thr, tmp[0])
                I("s_cbranch_vccnz", f"L_fix{sb}{sfx}")
                E.label(f"L_fixret{sb}{sfx}")
                I("s_mov_b32", s_exact, 0)
                for t, rs in tiles: I("v_add_f32", lsum[t], lsum[t], ssum[t])
            AS.mid(softmax)
            zc = first and sb == 0
            for dt in range(8):
                b_ = pool.get()
                def ld(b_=b_, dt=dt, sb=sb):
                    for hh in range(2):
                        I("ds_read_b64_tr_b16", b_.sub(2 * hh, 2), vV[dt & 3], mods=f"offset:{4608*(2*sb+hh)+128*(dt>>2)}")
                def mm(b_=b_, dt=dt, zc=zc):
                    for t in range(3):
                        I("v_mfma_f32_16x16x32_bf16", O(t, dt), b_, S(t, 0), 0 if zc else O(t, dt))
                AS.frag([b_], ld, mm)
                if sb == 0 and dt % 2 == 1:
                    b_ = pool.get()
                    def ld(b_=b_, dt=dt):
                        for z in range(2):
                            d2 = dt - 1 + z
                            tv = tmp[2 + z]
                            I("v_add_u32", tv, s_w4608, vV[d2 & 3])
                            I("ds_read_b64_tr_b16", b_.sub(2 * z, 2), tv, mods=f"offset:{128*(d2>>2)}")
                    def mm(b_=b_, dt=dt, zc=zc):
                        for z in range(2):
                            d2 = dt - 1 + z
                            I("v_mfma_f32_16x16x16_bf16", O(3, d2), b_.sub(2 * z, 2), S3.sub(0, 2), 0 if zc else O(3, d2))
                    AS.frag([b_], ld, mm)
        assert not dmas
        if not last:
            def toggles():
                for r in vK + vV: I("v_add_u32", r, s_delta, r)
            AS.mid(toggles)
        AS.run()
        if not last:
            I("s_add_u32", s_kvoff, s_kvoff, 16384)
            I("s_sub_u32", s_dnext, DSLOT, s_dnext)
            I("s_sub_u32", s_delta, 0, s_delta)
    block("A")
    E.label("L_blk")
    if "H" in PRIO:
        I("s_cmp_eq_u32", s_j, int(os.environ.get("PRIOJ", "2")))
        I("s_cbranch_scc0", "L_pr2")
        setprio(True, "L_pr3")
        E.label("L_pr2")
    block("B")
    I("s_add_u32", s_j, s_j, 1)
    I("s_cmp_lt_u32", s_j, 6)
    I("s_cbranch_scc1", "L_blk")
    block("C")

    ST_("epi")
    if STAMP: E.waitcnt(lgkm=0)
    def xreduce(r, op, tv):
        I("v_mov_b32", tv, r)
        I("s_nop", 1)
        I("v_permlane32_swap_b32", tv, r)
        I(op, r, r, tv)
        I("v_mov_b32", tv, r)
        I("s_nop", 1)
        I("v_permlane16_swap_b32", tv, r)
        I(op, r, r, tv)
    for t in (3, 0, 1, 2): xreduce(lsum[t], "v_add_f32", tmp[0])
    I("s_lshl_b32", s_t0, s_w, 13)
    I("s_add_u32", s_t0, s_t0, DSLOT)
    I("v_add_u32", tmp[1], s_t0, v_l16)
    for dt in range(8): I("ds_write_b128", tmp[1], O(3, dt), mods=f"offset:{dt*1024}")
    I("v_lshrrev_b32", tmp[2], 1, v_l16)
    I("v_add_u32", tmp[2], DSLOT, tmp[2])
    I("s_lshl_b32", s_t0, s_w, 9)
    I("v_add_u32", tmp[3], s_t0, tmp[2])
    I("v_mov_b32", v(30), mneg3)
    I("v_mov_b32", v(31), lsum[3])
    I("ds_write_b64", tmp[3], v(30, 2), mods="offset:32768")
    for t in range(3): I("v_rcp_f32", MN[t][0], lsum[t])
    E.waitcnt(lgkm=0)
    I("s_barrier")
    ST = [v(64 + 2 * w_, 2) for w_ in range(4)]
    for w_ in range(4): I("ds_read_b64", ST[w_], tmp[2], mods=f"offset:{32768+512*w_}")
    I("s_lshl_b32", s_t0, s_w, 11)
    I("s_add_u32", s_t0, s_t0, DSLOT)
    I("v_add_u32", tmp[1], s_t0, v_l16)
    PB = [[a(96 + 8 * w_ + 4 * z, 4) for z in range(2)] for w_ in range(4)]
    for w_ in range(4):
        for z in range(2): I("ds_read_b128", PB[w_][z], tmp[1], mods=f"offset:{8192*w_+1024*z}")
    I("s_mul_i32", s_t1, s_w, 3 * 1024)
    I("s_add_u32", s_t1, s_t1, s_obase)
    jobs = []
    for t in range(3):
        for k in range(4):
            def sink(R, t=t, k=k):
                I("s_add_u32", s_t0, s_t1, (k * 104 + t) * 1024)
                I("buffer_store_dwordx4", R, v_l16, sWS, s_t0, mods="offen" + NT_O)
            jobs.append((O(t, 2 * k), O(t, 2 * k + 1), MN[t][0], sink))
    pack_seq(jobs, swaps=False)
    E.waitcnt(lgkm=0)
    I("v_min_f32", tmp[0], ST[0][0], ST[1][0])
    I("v_min3_f32", tmp[0], tmp[0], ST[2][0], ST[3][0])
    for w_ in range(4): I("v_sub_f32", ST[w_][0], tmp[0], ST[w_][0])
    for w_ in range(4): I("v_exp_f32", ST[w_][0], ST[w_][0])
    I("s_nop", 0)
    I("v_mul_f32", tmp[0], ST[0][0], ST[0][1])
    for w_ in range(1, 4): I("v_fmac_f32", tmp[0], ST[w_][0], ST[w_][1])
    I("v_rcp_f32", tmp[0], tmp[0])
    I("s_nop", 0)
    for w_ in range(4): I("v_mul_f32", ST[w_][0], ST[w_][0], tmp[0])
    ACCv = [AF[0], AF[1]]
    for z in range(2):
        for r in range(4):
            for w_ in range(4):
                I("v_accvgpr_read_b32", tmp[1 + (w_ & 1)], PB[w_][z][r])
                if w_ == 0: I("v_mul_f32", ACCv[z][r], tmp[1], ST[0][0])
                else: I("v_fmac_f32", ACCv[z][r], tmp[1 + (w_ & 1)], ST[w_][0])
    R = AF[2]
    I("v_cvt_pk_bf16_f32", R[0], ACCv[0][0], ACCv[0][1])
    I("v_cvt_pk_bf16_f32", R[1], ACCv[0][2], ACCv[0][3])
    I("v_cvt_pk_bf16_f32", R[2], ACCv[1][0], ACCv[1][1])
    I("v_cvt_pk_bf16_f32", R[3], ACCv[1][2], ACCv[1][3])
    I("s_mul_i32", s_t0, s_w, 104 * 1024)
    I("s_add_u32", s_t0, s_t0, s_obase)
    I("s_add_u32", s_t0, s_t0, 12 * 1024)
    I("buffer_store_dwordx4", R, v_l16, sWS, s_t0, mods="offen" + NT_O)
    if STAMP:
        E.waitcnt(vm=0)
        ST_("end")
        if STAMP == 3: ST_("RTend")
        ST_.flush(sWS, v(52), v(53), s_t0, s_w, 4)
    E.label("L_attn_end")
    I("s_endpgm")

    for sb, sfx in [(sb, sfx) for sfx in 'ABC' for sb in range(2)]:
        E.reset_hist(); E.vm = []; E.lgkm = []
        E.label(f"L_fix{sb}{sfx}")
        I("s_cmp_lg_u32", s_exact, 0)
        I("s_cbranch_scc1", f"L_fixret{sb}{sfx}")
        I("s_mov_b32", s_exact, 1)
        E.waitcnt(lgkm=0)
        for fr in redo_pending[(sb, sfx)]: fr["loads"]()
        E.waitcnt(lgkm=0)
        I("s_branch", f"L_redo{sb}{sfx}")
        E.label(f"L_exact{sb}{sfx}")
        E.nop(16)
        mx = tmp[1]
        for t in range(3):
            rs = [S(t, 0)[r] for r in range(4)] + [S(t, 1)[r] for r in range(4)]
            I("v_max3_f32", mx, rs[0], rs[1], rs[2])
            I("v_max3_f32", mx, mx, rs[3], rs[4])
            I("v_max3_f32", mx, mx, rs[5], rs[6])
            I("v_max_f32", mx, mx, rs[7])
            xreduce(mx, "v_max_f32", tmp[0])
            I("v_sub_f32", mx, 0, mx)
            I("v_min_f32", mx, s_dlim, mx)
            for r in range(4): I("v_add_f32", MN[t][r], MN[t][r], mx)
            for r in rs: I("v_add_f32", r, r, mx)
            I("v_exp_f32", ssum[t], mx)
        if sb == 0:
            I("v_max3_f32", mx, S3[0], S3[1], S3[2])
            I("v_max_f32", mx, mx, S3[3])
            xreduce(mx, "v_max_f32", tmp[0])
            I("v_add_f32", mx, mx, mneg3)
            I("v_sub_f32", mx, 0, mx)
            I("v_min_f32", mx, s_dlim, mx)
            I("v_add_f32", mneg3, mneg3, mx)
            I("v_exp_f32", ssum[3], mx)
        I("s_mov_b32", s_dlim, 0)
        I("s_cmp_lg_u32", s_first, 0)
        I("s_mov_b32", s_first, 0)
        I("s_cbranch_scc1", f"L_exret{sb}{sfx}")
        for t in (range(4) if sb == 0 else range(3)):
            I("v_mul_f32", lsum[t], lsum[t], ssum[t])
            for n in range(0, 32, 2):
                for r in range(2): I("v_accvgpr_read_b32", tmp[r], a(t * 32 + n + r))
                for r in range(2): I("v_mul_f32", tmp[r], tmp[r], ssum[t])
                for r in range(2): I("v_accvgpr_write_b32", a(t * 32 + n + r), tmp[r])
        I("s_nop", 3)
        I("s_branch", f"L_exret{sb}{sfx}")

K2_DEPTH = 5
LDS2 = 4 * 28 * 1024
def gen_oproj(E):
    global STAMP
    I = E.i
    sWS, sOUT = s(8, 4), s(12, 4)
    s_p, s_b, s_half, s_nb, s_w = s(16), s(17), s(18), s(19), s(20)
    s_t0, s_t1, s_t2 = s(21), s(22), s(23)
    s_o, s_wf = s(24), s(25)
    v_tid = v(0); v_l16 = v(1); v_l16b = v(2); tmp = [v(4 + n) for n in range(4)]
    def FB(slot, n): return v(8 + slot * 44 + n * 4, 4)
    def ACC(q, n): return a((q * 4 + n) * 4, 4)
    E.reset_hist(); E.vm = []; E.lgkm = []
    E.raw(".globl oproj_kernel\n.p2align 8\n.type oproj_kernel,@function\noproj_kernel:")
    I("s_cmp_ge_u32", s(2), 256)
    I("s_cbranch_scc1", "L_op_end")
    I("s_load_dwordx2", s(4, 2), s(0, 2), 80)
    I("s_load_dwordx2", s(6, 2), s(0, 2), 96)
    I("s_and_b32", s_t0, s(2), 7)
    I("s_lshr_b32", s_t1, s(2), 3)
    I("s_lshr_b32", s_p, s_t0, 2)
    I("s_and_b32", s_t0, s_t0, 3)
    I("s_lshl_b32", s_b, s_t0, 1)
    I("s_lshr_b32", s_t2, s_t1, 4)
    I("s_add_u32", s_b, s_b, s_t2)
    I("s_bfe_u32", s_half, s_t1, "0x10003")
    I("s_and_b32", s_nb, s_t1, 7)
    I("v_lshrrev_b32", tmp[0], 6, v_tid)
    I("s_nop", 0)
    I("v_readfirstlane_b32", s_w, tmp[0])
    I("v_and_b32", tmp[0], 63, v_tid)
    I("v_lshlrev_b32", v_l16, 4, tmp[0])
    I("v_add_u32", v_l16b, 4096, v_l16)
    I("s_lshl_b32", s_t0, s_p, 7)
    I("s_add_u32", s_t0, s_t0, s_w)
    I("s_mul_i32", s_t1, s_t0, 104)
    I("s_mul_i32", s_t2, s_b, 13)
    I("s_add_u32", s_t1, s_t1, s_t2)
    I("s_mul_i32", s_t2, s_half, 6)
    I("s_add_u32", s_t1, s_t1, s_t2)
    I("s_lshl_b32", s_o, s_t1, 10)
    I("s_lshl_b32", s_t1, s_t0, 5)
    I("s_lshl_b32", s_t2, s_nb, 2)
    I("s_add_u32", s_t1, s_t1, s_t2)
    I("s_lshl_b32", s_t1, s_t1, 10)
    I("s_add_u32", s_wf, s_t1, OFRAG_BYTES)
    E.waitcnt(lgkm=0)
    I("s_mov_b32", sWS[0], s(6)); I("s_mov_b32", sWS[1], s(7)); I("s_mov_b32", sWS[2], WS_USED if STAMP != 5 else 64 * 1024 * 1024); I("s_mov_b32", sWS[3], "0x00020000")
    I("s_mov_b32", sOUT[0], s(4)); I("s_mov_b32", sOUT[1], s(5)); I("s_mov_b32", sOUT[2], 8 * 208 * 1024 * 2); I("s_mov_b32", sOUT[3], "0x00020000")
    def loads(it):
        sl = it % K2_DEPTH
        for n in range(4):
            I("buffer_load_dwordx4", FB(sl, 7 + n), v_l16, sWS, s_wf, mods=(f"offen offset:{1024*n}" if n else "offen") + NT_K2, tag=f"k{it}")
        for q in range(7):
            vv = v_l16 if q < 4 else v_l16b
            o = 1024 * (q & 3)
            I("buffer_load_dwordx4", FB(sl, q), vv, sWS, s_o, mods=(f"offen offset:{o}" if o else "offen") + NT_K2, tag=f"k{it}")
        I("s_add_u32", s_o, s_o, 4 * 104 * 1024)
        I("s_add_u32", s_wf, s_wf, 4 * 32 * 1024)
    NIT = 32
    save = STAMP
    STAMP = 1 if save == 5 else 0
    ST2 = Stamper(E, 26, 3 if False else 16)
    ST2("start"); ST2("RTstart")
    if STAMP: E.waitcnt(lgkm=0)
    for it in range(K2_DEPTH - 1): loads(it)
    for it in range(NIT):
        if it + K2_DEPTH - 1 < NIT: loads(it + K2_DEPTH - 1)
        sl = it % K2_DEPTH
        for q in range(7):
            E.wait_vm(FB(sl, q), *[FB(sl, 7 + n) for n in range(4)])
            if q == 0 and it in (0, 1, 2, 8, 16, 24, 31):
                ST2(f"it{it}")
                if STAMP: E.waitcnt(lgkm=0)
            for n in range(4):
                I("v_mfma_f32_16x16x32_bf16", ACC(q, n), FB(sl, 7 + n), FB(sl, q), 0 if it == 0 else ACC(q, n))
    ST2("loopend")
    if STAMP: E.waitcnt(lgkm=0)
    E.nop(10)
    I("s_mul_i32", s_t0, s_w, 28 * 1024)
    I("v_add_u32", tmp[0], s_t0, v_l16)
    for q in range(7):
        for n in range(4):
            I("ds_write_b128", tmp[0], ACC(q, n), mods=f"offset:{(q*4+n)*1024}")
    E.waitcnt(lgkm=0)
    I("s_barrier")
    I("s_lshl_b32", s_t0, s_w, 10)
    I("v_add_u32", tmp[0], s_t0, v_l16)
    I("v_add_u32", tmp[1], 56 * 1024, tmp[0])
    I("v_and_b32", tmp[2], 15, v_tid)
    I("v_lshlrev_b32", tmp[2], 11, tmp[2])
    I("v_bfe_u32", tmp[3], v_tid, 4, 2)
    I("v_lshl_add_u32", tmp[2], tmp[3], 3, tmp[2])
    I("s_mul_i32", s_t0, s_b, 208)
    I("s_mul_i32", s_t1, s_half, 96)
    I("s_add_u32", s_t0, s_t0, s_t1)
    I("s_lshl_b32", s_t0, s_t0, 11)
    I("s_lshl_b32", s_t1, s_p, 10)
    I("s_add_u32", s_t0, s_t0, s_t1)
    I("s_lshl_b32", s_t1, s_nb, 7)
    I("s_add_u32", s_t0, s_t0, s_t1)
    I("s_lshl_b32", s_t1, s_w, 5)
    I("s_add_u32", s_t0, s_t0, s_t1)
    def P(q, w_): return v(8 + (q * 4 + w_) * 4, 4)
    for q in range(7):
        for w_ in range(4):
            base = tmp[0] if w_ < 2 else tmp[1]
            I("ds_read_b128", P(q, w_), base, mods=f"offset:{(w_&1)*28*1024 + q*4096}")
        if q >= 2:
            reduce_store(E, q - 2, P, tmp, sOUT, s_t0, s_t1)
    for q in (5, 6): reduce_store(E, q, P, tmp, sOUT, s_t0, s_t1)
    if STAMP:
        ST2("stissued"); E.waitcnt(vm=0, lgkm=0)
        ST2("end"); ST2("RTend")
        ST2.flush(sWS, v(8), v(9), s_t0, s_w, 4)
    STAMP = save
    E.label("L_op_end")
    I("s_endpgm")

def reduce_store(E, q, P, tmp, sOUT, s_t0, s_t1):
    I = E.i
    E.wait_lgkm(*[P(q, w_) for w_ in range(4)])
    for r in range(4):
        I("v_add_f32", P(q, 0)[r], P(q, 0)[r], P(q, 1)[r])
        I("v_add_f32", P(q, 2)[r], P(q, 2)[r], P(q, 3)[r])
    for r in range(4):
        I("v_add_f32", P(q, 0)[r], P(q, 0)[r], P(q, 2)[r])
    I("v_cvt_pk_bf16_f32", P(q, 0)[0], P(q, 0)[0], P(q, 0)[1])
    I("v_cvt_pk_bf16_f32", P(q, 0)[1], P(q, 0)[2], P(q, 0)[3])
    I("s_add_u32", s_t1, s_t0, q * 16 * 2048)
    I("buffer_store_dwordx2", P(q, 0).sub(0, 2), tmp[2], sOUT, s_t1, mods="offen" + NT_OUT)

def kd(name, nvgpr, accum, nsgpr):
    return f""".amdhsa_kernel {name}
  .amdhsa_next_free_vgpr {nvgpr}
  .amdhsa_next_free_sgpr {nsgpr}
  .amdhsa_accum_offset {accum}
  .amdhsa_group_segment_fixed_size 0
  .amdhsa_kernarg_size 104
  .amdhsa_user_sgpr_count 2
  .amdhsa_user_sgpr_kernarg_segment_ptr 1
  .amdhsa_system_sgpr_workgroup_id_x 1
.end_amdhsa_kernel
"""

def main(out):
    global STAMP
    E = Emitter()
    hdr = open("cdna_kernels/" + NAME + ".s.ref").read().splitlines()
    head = [l for l in hdr if l.startswith(";") and "@launch" not in l and "Override launch" not in l and "grid=ceil" not in l]
    txt = "\n".join(head) + "\n"
    txt += f"; @launch kernel=attn_kernel grid=({os.environ.get('G1','512')},1,1) block=(256,1,1) lds={os.environ.get('L1', LDS1)}\n"
    txt += f"; @launch kernel=oproj_kernel grid=(256,1,1) block=(256,1,1) lds={LDS2}\n"
    txt += '.amdgcn_target "amdgcn-amd-amdhsa--gfx950"\n.text\n'
    sv = STAMP
    if STAMP == 5: STAMP = 0
    gen_attn(E)
    STAMP = sv
    c1 = dict(E.count); E.count = {}
    gen_oproj(E)
    txt += E.text()
    txt += '.section .rodata,"a"\n.p2align 6\n'
    txt += kd("attn_kernel", 256, 80, 102)
    txt += '.p2align 6\n'
    k2v = 8 + 44 * K2_DEPTH
    k2acc = (k2v + 3) // 4 * 4
    txt += kd("oproj_kernel", k2acc + 112, k2acc, 64)
    open(out, "w").write(txt)
    print("attn counts", c1, "oproj counts", E.count)
    if E.errors:
        print("\n".join(E.errors[:60])); print(len(E.errors), "errors"); sys.exit(1)

if __name__ == "__main__":
    main(sys.argv[1] if len(sys.argv) > 1 else "cdna_kernels/" + NAME + ".s")
```
